```python
import torch

def _softmax(x, axis=-1):
    return torch.softmax(x, dim=axis)
def _gelu(x):
    return torch.nn.functional.gelu(x, approximate="tanh")
def _silu(x):
    return torch.nn.functional.silu(x)
def _sigmoid(x):
    return torch.sigmoid(x)
def _layernorm(x, axis=-1, eps=1e-5):
    m = x.mean(dim=axis, keepdim=True)
    v = x.var(dim=axis, keepdim=True, unbiased=False)
    return (x - m) / torch.sqrt(v + eps)
def _scatter_add(tgt, idx, src, axis=0):
    return tgt.clone().index_add_(axis, idx, src)
def _segment_sum(src, seg, n):
    out = torch.zeros((n,) + src.shape[1:], dtype=src.dtype)
    return out.index_add_(0, seg, src)
def _pad(x, pw):
    flat = tuple(v for pair in reversed(pw) for v in pair)
    return torch.nn.functional.pad(x, flat)

kernel_name = 'recurrent_scan__gqa_block_cached__glu_gated_glu__prompt'

def setup_inputs():

    _w = (lambda a: (lambda t: t.to(torch.bfloat16) if t.is_floating_point() else t)(torch.as_tensor(a)))
    def _A_setup():
        B, Sq, D = 1, 2048, 512
        Hq, Hkv, Sk, Dh = 32, 32, 2048, 128
        assert Hq % Hkv == 0, (Hq, Hkv)
        return {
            "x": _w((lambda *s: torch.randn(*s, dtype=torch.bfloat16) * 0.05)(B, Sq, D)),
            "k_cache": _w((lambda *s: torch.randn(*s, dtype=torch.bfloat16) * 1.6)(B, Hkv, Sk, Dh)),
            "v_cache": _w((lambda *s: torch.randn(*s, dtype=torch.bfloat16) * 0.2)(B, Hkv, Sk, Dh)),
            "wq": _w((lambda *s: torch.randn(*s, dtype=torch.bfloat16) * 1.6)(D, Hq * Dh) * (D ** -0.5)),
            "wo": _w((lambda *s: torch.randn(*s, dtype=torch.bfloat16) * 0.2)(Hq * Dh, D) * ((Hq * Dh) ** -0.5)),
        }
    _A_in = _A_setup()

    def _B_setup():
        B, S, D, F = 1, 2048, 512, 1376
        return {
            "x": _w((lambda *s: torch.randn(*s, dtype=torch.bfloat16) * 0.05)(B, S, D)),
            "w_gate": _w((lambda *s: torch.randn(*s, dtype=torch.bfloat16) * 0.2)(D, F)),
            "w_up": _w((lambda *s: torch.randn(*s, dtype=torch.bfloat16) * 0.1)(D, F)),
            "w_down": _w((lambda *s: torch.randn(*s, dtype=torch.bfloat16) * 0.1)(F, D)),
        }
    _B_in = _B_setup()

    return {
        "A_x": _A_in["x"],
        "A_k_cache": _A_in["k_cache"],
        "A_v_cache": _A_in["v_cache"],
        "A_wq": _A_in["wq"],
        "A_wo": _A_in["wo"],
        "B_x": _B_in["x"],
        "B_w_gate": _B_in["w_gate"],
        "B_w_up": _B_in["w_up"],
        "B_w_down": _B_in["w_down"],
    }

def reference(A_x, A_k_cache, A_v_cache, A_wq, A_wo, B_x, B_w_gate, B_w_up, B_w_down):
    def _A_ref(x, k_cache, v_cache, wq, wo):
        B, Sq, D = x.shape
        Hq, Dh = 32, 128
        Hkv = k_cache.shape[1]
        rep = Hq // Hkv
        q = (lambda x, *d: x.permute(*d))((x @ wq).reshape(B, Sq, Hq, Dh), 0, 2, 1, 3)
        k = (lambda x, n, axis: torch.repeat_interleave(x, n, dim=axis))(k_cache, rep, axis=1)
        v = (lambda x, n, axis: torch.repeat_interleave(x, n, dim=axis))(v_cache, rep, axis=1)
        scores = torch.einsum("bhqd,bhkd->bhqk", q, k) * (Dh ** -0.5)
        p = _softmax(scores, axis=-1)
        o = torch.einsum("bhqk,bhkd->bhqd", p, v)
        return (lambda x, *d: x.permute(*d))(o, 0, 2, 1, 3).reshape(B, Sq, Hq * Dh) @ wo

    def _B_ref(x, w_gate, w_up, w_down):
        g = torch.einsum("bsd,df->bsf", x, w_gate)
        u = torch.einsum("bsd,df->bsf", x, w_up)
        h = _sigmoid(g) * u
        return torch.einsum("bsf,fd->bsd", h, w_down)

    x = A_x
    xn = _layernorm(x, axis=-1)
    s = _A_ref(xn, A_k_cache, A_v_cache, A_wq, A_wo)
    g = _silu(_B_ref(xn, B_w_gate, B_w_up, B_w_down))
    return x + s * g
```

```python
NAME = 'recurrent_scan__gqa_block_cached__glu_gated_glu__prompt'

class Asm:
    def __init__(self):
        self.L = []
    def __call__(self, s):
        for ln in s.split('\n'):
            ln = ln.strip()
            if ln:
                self.L.append(ln if ln.endswith(':') else '    ' + ln)
    def c(self, s):
        self.L.append('    ; ' + s)
    def text(self):
        return '\n'.join(self.L) + '\n'

def vr(b, n=4): return f'v[{b}:{b+n-1}]' if n > 1 else f'v{b}'
def ar(b, n=4): return f'a[{b}:{b+n-1}]' if n > 1 else f'a{b}'
def sr(b, n=4): return f's[{b}:{b+n-1}]' if n > 1 else f's{b}'

def kstart(a, k):
    a.L.append(f'.globl {k}')
    a.L.append('.p2align 8')
    a.L.append(f'.type {k},@function')
    a.L.append(f'{k}:')

def kd(k, vg, acc, sg=102):
    return f'''.section .rodata,"a"
.p2align 6
.amdhsa_kernel {k}
  .amdhsa_next_free_vgpr {vg}
  .amdhsa_next_free_sgpr {sg}
  .amdhsa_accum_offset {acc}
  .amdhsa_group_segment_fixed_size 0
  .amdhsa_kernarg_size 96
  .amdhsa_user_sgpr_count 2
  .amdhsa_user_sgpr_kernarg_segment_ptr 1
  .amdhsa_system_sgpr_workgroup_id_x 1
.end_amdhsa_kernel
.text
'''

def srd(a, d, base, nrec, add=None):
    if add is None:
        a(f's_mov_b32 s{d}, s{base}\ns_mov_b32 s{d+1}, s{base+1}')
    else:
        a(f's_add_u32 s{d}, s{base}, {add}\ns_addc_u32 s{d+1}, s{base+1}, 0')
    a(f's_mov_b32 s{d+2}, {nrec}\ns_mov_b32 s{d+3}, 0x20000')

WS_XN = 0
WS_H = 2 << 20
WS_O = 8 << 20
WS_DBG = 32 << 20
XN_BYTES = 2048 * 512 * 2
H_BYTES = 128 * 43 * 1024
O_BYTES = 128 * 128 * 1024

class Stamps:
    def __init__(self, a, on, kidx, n=12):
        self.a = a; self.on = on; self.kidx = kidx; self.n = 0
    def mark(self):
        if not self.on: return
        i = self.n; self.n += 1
        assert i < 14
        self.a(f's_memrealtime s[96:97]\ns_memtime s[98:99]\ns_waitcnt lgkmcnt(0)\ns_mov_b32 s{64+2*i}, s96\ns_mov_b32 s{65+2*i}, s98')
    def flush(self, swave, vt):
        if not self.on: return
        a = self.a
        a('s_load_dwordx2 s[96:97], s[0:1], 88\ns_waitcnt lgkmcnt(0)')
        a(f's_add_u32 s96, s96, {WS_DBG + self.kidx*0x40000}\ns_addc_u32 s97, s97, 0\ns_mov_b32 s98, 0x40000\ns_mov_b32 s99, 0x20000')
        a(f's_lshl_b32 s100, s2, 10\ns_lshl_b32 s101, s{swave}, 7\ns_add_u32 s100, s100, s101')
        a(f'v_mov_b32 v{vt+1}, 0')
        for i in range(2*self.n):
            a(f'v_mov_b32 v{vt}, s{64+i}\nbuffer_store_dword v{vt}, v{vt+1}, s[96:99], s100 offen offset:{4*i}\ns_waitcnt vmcnt(0)')
```

```python
from asmlib import *
def gen_k1(k='ln_kernel', dbg=False):
    a = Asm(); kstart(a, k); st = Stamps(a, dbg, 0)
    a(f's_cmp_ge_u32 s2, 256\ns_cbranch_scc1 L{k}_end')
    st.mark()
    if dbg: a('v_lshrrev_b32 v1, 6, v0\ns_nop 0\nv_readfirstlane_b32 s20, v1')
    a('s_load_dwordx2 s[4:5], s[0:1], 0')
    a('s_load_dwordx2 s[6:7], s[0:1], 88')
    a.c('row = wg*8 + tid>>4 ; cc = tid&15 ; g = cc&3 ; ks0 = cc>>2')
    a('v_lshrrev_b32 v1, 4, v0')
    a('s_lshl_b32 s3, s2, 3')
    a('v_add_u32 v1, s3, v1')
    a('v_and_b32 v2, 3, v0')
    a('v_bfe_u32 v3, v0, 2, 2')
    a('v_lshlrev_b32 v4, 10, v1')
    a('v_lshl_add_u32 v4, v3, 6, v4')
    a('v_lshl_add_u32 v4, v2, 3, v4')
    a('v_lshrrev_b32 v5, 4, v1')
    a('v_lshlrev_b32 v5, 14, v5')
    a('v_lshl_add_u32 v5, v3, 10, v5')
    a('v_lshl_add_u32 v5, v2, 8, v5')
    a('v_and_b32 v6, 15, v1')
    a('v_lshl_add_u32 v5, v6, 4, v5')
    a('s_waitcnt lgkmcnt(0)')
    srd(a, 8, 4, XN_BYTES)
    srd(a, 12, 6, XN_BYTES, WS_XN)
    for i in range(4):
        for jj in range(2):
            a(f'buffer_load_dwordx2 v[{8+4*i+2*jj}:{9+4*i+2*jj}], v4, s[8:11], 0 offen offset:{256*i+32*jj}')
    for r in range(16):
        if r % 2 == 0: a(f's_waitcnt vmcnt({7 - r//2})')
        a(f'v_lshlrev_b32 v{32+2*r}, 16, v{8+r}')
        a(f'v_and_b32 v{33+2*r}, 0xffff0000, v{8+r}')
    def tree(dst, regs):
        regs = list(regs); t = 64
        while len(regs) > 1:
            nxt = []
            for i in range(0, len(regs), 2):
                a(f'v_add_f32 v{t}, v{regs[i]}, v{regs[i+1]}'); nxt.append(t); t += 1
            regs = nxt
        a(f'v_mov_b32 v{dst}, v{regs[0]}')
    def rowred(r):
        for sh in (8, 4, 2, 1):
            a('s_nop 1')
            a(f'v_add_f32_dpp v{r}, v{r}, v{r} row_ror:{sh} row_mask:0xf bank_mask:0xf')
    tree(24, range(32, 64)); rowred(24)
    a('v_mul_f32 v24, 0x3b000000, v24')
    for i in range(4): a(f'v_mov_b32 v{26+i}, 0')
    for r in range(32):
        a(f'v_sub_f32 v{64+r}, v{32+r}, v24')
    for r in range(32):
        a(f'v_fmac_f32 v{26+r%4}, v{64+r}, v{64+r}')
    a('v_add_f32 v26, v26, v27\nv_add_f32 v28, v28, v29\nv_add_f32 v26, v26, v28')
    rowred(26)
    a('v_mul_f32 v26, 0x3b000000, v26')
    a('v_cvt_pk_bf16_f32 v25, v24, v26')
    a('v_lshlrev_b32 v24, 16, v25')
    a('v_and_b32 v26, 0xffff0000, v25')
    a('v_add_f32 v26, 0x3727c5ac, v26')
    a('v_cvt_pk_bf16_f32 v26, v26, v26\nv_and_b32 v26, 0xffff0000, v26')
    a('v_sqrt_f32 v26, v26\ns_nop 0')
    a('v_cvt_pk_bf16_f32 v26, v26, v26\nv_and_b32 v26, 0xffff0000, v26')
    a('v_rcp_f32 v27, v26')
    for r in range(32):
        a(f'v_sub_f32 v{32+r}, v{32+r}, v24')
    for r in range(16):
        a(f'v_cvt_pk_bf16_f32 v{8+r}, v{32+2*r}, v{33+2*r}')
    for r in range(16):
        a(f'v_lshlrev_b32 v{32+2*r}, 16, v{8+r}')
        a(f'v_and_b32 v{33+2*r}, 0xffff0000, v{8+r}')
    for r in range(32):
        a(f'v_mul_f32 v{64+r}, v{32+r}, v27')
    for r in range(32):
        a(f'v_fma_f32 v{32+r}, -v{64+r}, v26, v{32+r}')
    for r in range(32):
        a(f'v_fmac_f32 v{64+r}, v{32+r}, v27')
    for r in range(16):
        a(f'v_cvt_pk_bf16_f32 v{8+r}, v{64+2*r}, v{65+2*r}')
    for i in range(4):
        a(f's_movk_i32 s3, {4096*i}')
        a(f'buffer_store_dwordx4 v[{8+4*i}:{11+4*i}], v5, s[12:15], s3 offen')
    if dbg: a('s_waitcnt vmcnt(0)')
    st.mark(); st.flush(20, 2)
    a(f'L{k}_end:\ns_endpgm')
    return a.text() + kd(k, 96, 96, 102 if dbg else 32), (k, 256, 128, 0)
```

```python
from asmlib import *
import struct
def f2u(x): return struct.unpack('<I', struct.pack('<f', x))[0]
QSCALE = f2u(1.4426950408889634 / (128 ** 0.5))

V_LANE = 0
V_DK = 1
V_DV = 5
V_DQ = 7
V_DG = 11
V_XN = 14
V_RQ = 15
V_RG = 19
V_RK = 20
V_RV = 24
V_Q = 32
V_S = 96
V_GU = 160
V_P = 160
V_NM = 192
V_T = 208
A_O = 0
A_L = 128
A_ONE = 144
A_K = 192
A_V = 224
A_WA = 0
A_XB = 128
S_K = 8; S_V = 12; S_WQ = 16; S_GU = 20; S_XN = 24; S_H = 28; S_O = 32
S_W = 36
S_HEAD = 37; S_QB = 38
S_M0 = 39
S_MG = 40
S_XO = 41
S_KO = 45; S_VO = 46
S_CNT = 47; S_RETRY = 48; S_T = 49
S_SC = 56
LDS_V = 65536
LDS_FLAG = 131072

def mfma(d, a_, b_, c): return f'v_mfma_f32_16x16x32_bf16 {d}, {a_}, {b_}, {c}'

class Sched:
    def __init__(self, mf):
        self.mf = mf; n = len(mf)
        self.sc = [[] for _ in range(n)]; self.mem = [[] for _ in range(n)]; self.va = [[] for _ in range(n)]
        self.load = [0] * n
    def put(self, g, ins, kind, cost=1):
        (self.mem if kind == 'm' else self.va)[g].append(ins); self.load[g] += cost
    def place(self, ins, kind, lo, hi=None, cost=1):
        n = len(self.mf); hi = n - 1 if hi is None else min(hi, n - 1)
        for g in range(lo, hi + 1):
            if self.load[g] + cost <= 2:
                self.put(g, ins, kind, cost); return g
        g = min(range(lo, hi + 1), key=lambda x: self.load[x])
        self.put(g, ins, kind, cost); return g
    def scalar(self, g, ins, hi=None):
        n = len(self.mf); hi = g if hi is None else min(hi, n - 1)
        for x in range(g, hi + 1):
            if not self.sc[x]:
                self.sc[x].append(ins); return x
        self.sc[g].append(ins); return g
    def emit(self, a):
        for g, m in enumerate(self.mf):
            a(m)
            for x in self.sc[g] + self.mem[g] + self.va[g]: a(x)

def dma_k(i): return f'buffer_load_dwordx4 v{V_DK+i}, {sr(S_K)}, s{S_KO} offen offset:{1024*i} lds'
def dma_v(i): return f'buffer_load_dwordx4 v{V_DV+(i&1)}, {sr(S_V)}, s{S_VO} offen offset:{1024*i} lds'
def rd_k(f, t, un):
    ds, kvb = f >> 1, f & 1
    return f'ds_read_b128 {ar(A_K+4*f)}, v{V_RK+ds} offset:{(t%4)*16384 + un*8192 + kvb*4096}'
def rd_v(dt, jj, t, un):
    return f'ds_read_b64_tr_b16 {ar(A_V+4*dt+2*jj,2)}, v{V_RV+dt} offset:{((t+1)%4)*16384 + un*8192 + jj*4096}'

def qk_mfmas(sb, first_c):
    mf = []
    for n in range(32):
        qt = n // 8; ds = (n % 8) // 2; kvb = n % 2 if ds % 2 == 0 else 1 - n % 2
        s = vr(sb + 8*qt + 4*kvb)
        c = s if ds > 0 else first_c(qt)
        mf.append(mfma(s, ar(A_K + 4*(2*ds+kvb)), vr(V_Q + 16*qt + 4*ds), c))
    return mf
def pv_mfmas(pb):
    mf = []
    for hq in range(2):
        for n in range(16):
            dt = n // 2; qt = 2*hq + (n % 2 if dt % 2 == 0 else 1 - n % 2)
            o = ar(A_O + 16*dt + 4*qt)
            mf.append(mfma(o, ar(A_V + 4*dt), vr(pb + 4*qt), o))
        for qt in (2*hq, 2*hq+1):
            l = ar(A_L + 4*qt)
            mf.append(mfma(l, ar(A_ONE), vr(pb + 4*qt), l))
    return mf

def softmax_fill(s, sb, pb, e0, gaps):
    for i, g in enumerate(gaps):
        r = sb + e0 + i
        s.put(g, f'v_exp_f32 v{r}, v{r}', 'v', 2)
    return [(gaps[i] + 1, f'v_cvt_pk_bf16_f32 v{pb + (e0+i)//2}, v{sb+e0+i-1}, v{sb+e0+i}') for i in range(1, 16, 2)]

def phase_qk(a, u, barrier):
    s = Sched(qk_mfmas(V_S + 32*((u+1) % 2), lambda qt: vr(V_NM + 4*qt)))
    cv = softmax_fill(s, V_S + 32*(u % 2), V_P + 16*(u % 2), 16, [2*i for i in range(16)])
    if barrier: s.scalar(0, 's_barrier')
    t, un = u // 2, u % 2
    cvg = set(g for g, _ in cv)
    q = [(dt, jj) for dt in range(8) for jj in range(2)]
    g = 1
    while q:
        for _ in range(1 if g in cvg else 2):
            if q:
                dt, jj = q.pop(0); s.put(g, rd_v(dt, jj, t, un), 'm')
        g += 2
    for g, ins in cv: s.place(ins, 'v', g)
    s.scalar(31, 's_waitcnt lgkmcnt(0)')
    s.emit(a)

def phase_pv(a, u, kreads=True, dma=True, soft=True, endwait=None, extra_scalar=()):
    s = Sched(pv_mfmas(V_P + 16*(u % 2)))
    n = len(s.mf)
    cv = []
    if soft:
        cv = softmax_fill(s, V_S + 32*((u+1) % 2), V_P + 16*((u+1) % 2), 0, [1 + 2*i + (1 if i >= 8 else 0) for i in range(16)])
    if kreads:
        t, un = (u+2) // 2, u % 2
        for f in range(8): s.place(rd_k(f, t, un), 'm', 2*f)
    if dma:
        T = u // 2 + 1
        slot = (T + 3) % 4
        if u % 2 == 0:
            s.scalar(15, f's_add_u32 m0, s{S_M0}, {slot*16384}', 17)
            for i in range(4): g = s.place(dma_k(i), 'm', 19 + 4*i)
            s.scalar(g + 1, f's_add_u32 s{S_KO}, s{S_KO}, 16384', n - 2)
        else:
            s.scalar(15, f's_add_u32 m0, s{S_M0}, {LDS_V + slot*16384}', 17)
            for i in range(4): g = s.place(dma_v(i), 'm', 19 + 4*i)
            s.scalar(g + 1, f's_add_u32 s{S_VO}, s{S_VO}, 16384', n - 2)
    for g, ins in cv: s.place(ins, 'v', g)
    for g, ins in extra_scalar: s.scalar(g, ins, g + 3)
    if endwait: s.scalar(n - 1, endwait)
    s.emit(a)

def gen_k2(k='attn_kernel', dbg=False):
    a = Asm(); kstart(a, k); st = Stamps(a, dbg, 1)
    a(f's_cmp_ge_u32 s2, 256\ns_cbranch_scc1 L{k}_end')
    st.mark()
    a('s_load_dwordx4 s[8:11], s[0:1], 8')
    a('s_load_dwordx2 s[16:17], s[0:1], 24')
    a('s_load_dwordx4 s[20:23], s[0:1], 48')
    a('s_load_dwordx2 s[4:5], s[0:1], 88')
    a('v_lshrrev_b32 v1, 6, v0\nv_and_b32 v0, 63, v0')
    a(f'v_readfirstlane_b32 s{S_W}, v1')
    a(f's_and_b32 s{S_HEAD}, s2, 7\ns_lshl_b32 s{S_HEAD}, s{S_HEAD}, 2\ns_bfe_u32 s{S_T}, s2, 0x20003\ns_add_u32 s{S_HEAD}, s{S_HEAD}, s{S_T}')
    a(f's_lshr_b32 s{S_QB}, s2, 5')
    a(f's_lshl_b32 s{S_M0}, s{S_W}, 12')
    a('v_and_b32 v40, 15, v0\nv_lshrrev_b32 v41, 4, v0\nv_lshrrev_b32 v42, 2, v0\nv_and_b32 v43, 3, v0')
    a(f's_lshl_b32 s{S_T}, s{S_W}, 4')
    a(f'v_add_u32 v44, s{S_T}, v41')
    a('v_lshlrev_b32 v45, 1, v41\nv_xor_b32 v45, v45, v40\nv_lshlrev_b32 v45, 4, v45')
    a('v_xor_b32 v46, 128, v45')
    a(f'v_lshl_add_u32 v{V_DQ}, v44, 13, v45\nv_lshl_add_u32 v{V_DQ+1}, v44, 13, v46')
    a(f'v_add_u32 v{V_DQ+1}, {4*8192-1024}, v{V_DQ+1}')
    a(f'v_add_u32 v{V_DQ+2}, {8*8192-2048}, v{V_DQ}\nv_add_u32 v{V_DQ+3}, {8*8192-2048}, v{V_DQ+1}')
    a(f'v_lshl_add_u32 v{V_DV}, v44, 8, v45\nv_lshl_add_u32 v{V_DV+1}, v44, 8, v46')
    a('v_xor_b32 v45, v40, v41\nv_lshlrev_b32 v45, 4, v45')
    a(f'v_lshl_add_u32 v{V_DK}, v44, 8, v45')
    for i in range(1, 4): a(f'v_xor_b32 v{V_DK+i}, {64*i}, v{V_DK}')
    a(f'v_lshl_add_u32 v{V_RK}, v40, 8, v45')
    for i in range(1, 4): a(f'v_xor_b32 v{V_RK+i}, {64*i}, v{V_RK}')
    a(f's_and_b32 s{S_T}, s{S_W}, 1\ns_mul_i32 s{S_T}, s{S_T}, 192\ns_mul_i32 s{S_T+1}, s{S_HEAD}, 96\ns_mov_b32 s{S_T+2}, 10923\ns_movk_i32 s{S_T+3}, 2752')
    for i in range(3):
        a(f'v_add_u32 v45, s{S_T}, v0')
        if i: a(f'v_add_u32 v45, {64*i}, v45')
        a(f'v_mul_u32_u24 v46, s{S_T+2}, v45\nv_lshrrev_b32 v46, 16, v46')
        a('v_mul_u32_u24 v47, 6, v46\nv_sub_u32 v47, v45, v47')
        a(f'v_lshl_add_u32 v47, v47, 4, s{S_T+1}')
        a(f'v_mad_u32_u24 v48, v46, s{S_T+3}, v47')
        if i: a(f'v_subrev_u32 v48, {1024*i}, v48')
        a(f'v_cmp_gt_u32 vcc, s{S_T+3}, v47\nv_mov_b32 v49, 0x40000000\ns_nop 0')
        a(f'v_cndmask_b32 v{V_DG+i}, v49, v48, vcc')
    a(f's_and_b32 s{S_MG}, s{S_W}, 1\ns_mul_i32 s{S_MG}, s{S_MG}, 3072\ns_lshr_b32 s{S_T}, s{S_W}, 1\ns_mul_i32 s{S_T}, s{S_T}, 6144')
    a(f's_add_u32 s{S_MG}, s{S_MG}, s{S_T}\ns_add_u32 s{S_MG}, s{S_MG}, {LDS_V}')
    a(f'v_lshlrev_b32 v{V_XN}, 4, v0')
    a('v_and_b32 v45, 7, v42\nv_lshlrev_b32 v45, 1, v45')
    a(f'v_xor_b32 v46, v45, v43\nv_lshlrev_b32 v46, 4, v46\nv_lshl_add_u32 v{V_RQ}, v42, 8, v46')
    for i in range(1, 4): a(f'v_xor_b32 v{V_RQ+i}, {64*i}, v{V_RQ}')
    a('v_lshrrev_b32 v46, 1, v43\nv_xor_b32 v46, v45, v46\nv_lshlrev_b32 v46, 4, v46\nv_lshl_add_u32 v46, v42, 8, v46')
    a(f'v_and_b32 v47, 1, v43\nv_lshl_add_u32 v46, v47, 3, v46\nv_add_u32 v{V_RV}, {LDS_V}, v46')
    for i in range(1, 8): a(f'v_xor_b32 v{V_RV+i}, {32*i}, v{V_RV}')
    a(f'v_mul_u32_u24 v46, 96, v42\nv_lshl_add_u32 v46, v43, 3, v46\nv_add_u32 v{V_RG}, {LDS_V}, v46')
    a('s_waitcnt lgkmcnt(0)')
    a(f's_lshl_b32 s{S_T}, s{S_HEAD}, 19')
    a(f's_add_u32 s12, s10, s{S_T}\ns_addc_u32 s13, s11, 0\ns_mov_b32 s14, 0x80000\ns_mov_b32 s15, 0x20000')
    a(f's_add_u32 s8, s8, s{S_T}\ns_addc_u32 s9, s9, 0\ns_mov_b32 s10, 0x80000\ns_mov_b32 s11, 0x20000')
    a(f's_lshl_b32 s{S_T}, s{S_HEAD}, 8')
    a(f's_add_u32 s16, s16, s{S_T}\ns_addc_u32 s17, s17, 0\ns_sub_u32 s18, {512*8192}, s{S_T}\ns_mov_b32 s19, 0x20000')
    a(f's_cmp_ge_u32 s{S_W}, 2\ns_cselect_b32 s20, s22, s20\ns_cselect_b32 s21, s23, s21\ns_mov_b32 s22, {512*2752}\ns_mov_b32 s23, 0x20000')
    a(f's_lshl_b32 s{S_T}, s{S_QB}, 4\ns_lshl_b32 s{S_T+1}, s{S_W}, 2\ns_add_u32 s{S_T}, s{S_T}, s{S_T+1}')
    a(f's_lshl_b32 s{S_T+1}, s{S_T}, 14')
    a(f's_add_u32 s24, s4, s{S_T+1}\ns_addc_u32 s25, s5, 0\ns_mov_b32 s26, 0x10000\ns_mov_b32 s27, 0x20000')
    a(f's_mul_i32 s{S_T+1}, s{S_T}, {43*1024}\ns_add_u32 s{S_T+1}, s{S_T+1}, {WS_H}')
    a(f's_add_u32 s28, s4, s{S_T+1}\ns_addc_u32 s29, s5, 0\ns_mov_b32 s30, {4*43*1024}\ns_mov_b32 s31, 0x20000')
    a(f's_lshl_b32 s{S_T+1}, s{S_T}, 17\ns_lshl_b32 s{S_T+2}, s{S_HEAD}, 12\ns_add_u32 s{S_T+1}, s{S_T+1}, s{S_T+2}\ns_add_u32 s{S_T+1}, s{S_T+1}, {WS_O}')
    a(f's_add_u32 s32, s4, s{S_T+1}\ns_addc_u32 s33, s5, 0\ns_mov_b32 s34, {3*131072+4096}\ns_mov_b32 s35, 0x20000')
    for qt in range(4): a(f's_mov_b32 s{S_XO+qt}, {16384*qt}')
    a(f's_mov_b32 s{S_KO}, 0\ns_mov_b32 s{S_VO}, 0\ns_mov_b32 s{S_RETRY}, 0\ns_mov_b32 s{S_SC}, {QSCALE}')

    vm = []
    def wait_vm(tag):
        idx = max(i for i, t in enumerate(vm) if t == tag)
        return len(vm) - 1 - idx
    def group_ops(gam):
        slot = gam % 4; ops = []
        if gam < 8:
            ops.append(('s', f's_add_u32 m0, s{S_M0}, {slot*16384}'))
            ops.append(('s', f's_mov_b32 s{S_T}, {gam*524288}'))
            for i in range(4): ops.append(('m', f'buffer_load_dwordx4 v{V_DQ+i}, {sr(S_WQ)}, s{S_T} offen offset:{1024*i} lds'))
            ops.append(('s', f's_add_u32 m0, s{S_MG}, {slot*16384}'))
            ops.append(('s', f's_mov_b32 s{S_T}, {gam*64*2752}'))
            for i in range(3): ops.append(('m', f'buffer_load_dwordx4 v{V_DG+i}, {sr(S_GU)}, s{S_T} offen offset:{1024*i} lds'))
        else:
            ops.append(('s', f's_add_u32 m0, s{S_M0}, {slot*16384}')); ops.append(('s', 's_nop 0'))
            for i in range(4): ops.append(('m', dma_k(i)))
            ops.append(('s', f's_add_u32 s{S_KO}, s{S_KO}, 16384'))
            if gam > 8:
                ops.append(('s', f's_add_u32 m0, s{S_M0}, {LDS_V + slot*16384}')); ops.append(('s', 's_nop 0'))
                for i in range(4): ops.append(('m', dma_v(i)))
                ops.append(('s', f's_add_u32 s{S_VO}, s{S_VO}, 16384'))
        return ops
    def emit_group(gam):
        for kind, ins in group_ops(gam):
            a(ins)
            if kind == 'm': vm.append(('g', gam))
    def xb(ks, qt): return ar(A_XB + 16*(ks % 8) + 4*qt)
    def ld_x(ks, qt):
        return f'buffer_load_dwordx4 {xb(ks,qt)}, v{V_XN}, {sr(S_XN)}, s{S_XO+qt} offen offset:{1024*(ks%4)}'
    def x_adv(): return [f's_add_u32 s{S_XO+qt}, s{S_XO+qt}, 4096' for qt in range(4)]
    emit_group(0)
    for ks in range(0, 2):
        for qt in range(4): a(ld_x(ks, qt)); vm.append(('x', ks))
    emit_group(1)
    for ks in range(2, 4):
        for qt in range(4): a(ld_x(ks, qt)); vm.append(('x', ks))
    for s_ in x_adv(): a(s_)
    emit_group(2)
    for ks in range(4, 6):
        for qt in range(4): a(ld_x(ks, qt)); vm.append(('x', ks))
    emit_group(3)
    st.mark()
    NI = 16 * 14; LA = 4
    def wa(n): return A_WA + 4*(n % 8)
    def rd_w(n, jj):
        ks, t = divmod(n, 14); e = ks // 2; base = (e % 4) * 16384
        row = 32*(ks % 2) + 16*jj
        d = ar(wa(n) + 2*jj, 2)
        if t < 8: return f'ds_read_b64_tr_b16 {d}, v{V_RQ+(t>>1)} offset:{base + row*256 + 8*(t&1)}'
        ft, up = (t-8) >> 1, (t-8) & 1
        return f'ds_read_b64_tr_b16 {d}, v{V_RG} offset:{base + row*96 + 32*ft + 6144*up}'
    def acc(t, qt):
        if t < 8: return vr(V_Q + 32*qt + 4*t)
        return vr(V_GU + 32*((t-8) >> 1) + 16*((t-8) & 1) + 4*qt)
    a(f's_waitcnt vmcnt({wait_vm(("x",0))})\ns_barrier')
    for n in range(LA):
        for jj in range(2): a(rd_w(n, jj))
    pend = []
    for n in range(NI):
        ks, t = divmod(n, 14)
        pre = []
        if t == 0 and ks > 0: pre.append(f'vmcnt({wait_vm(("x",ks))})')
        rem = min(LA - 1, NI - 1 - n)
        pre.append(f'lgkmcnt({2*rem})')
        a('s_waitcnt ' + ' '.join(pre))
        mf = []
        for qi in range(4):
            qt = qi if n % 2 == 0 else 3 - qi
            mf.append(mfma(acc(t, qt), ar(wa(n)), xb(ks, qt), acc(t, qt) if ks > 0 else '0'))
        s = Sched(mf)
        m = n + LA
        g0 = 0
        if m < NI:
            if m % 28 == 0:
                e = m // 28
                s.sc[0].append(f's_waitcnt vmcnt({wait_vm(("g",e))})'); s.sc[0].append('s_barrier')
                if e >= 2:
                    for kind, ins in group_ops(e + 2): pend.append((kind, ins, ('g', e + 2)))
            s.put(0, rd_w(m, 0), 'm'); s.put(0 if m % 28 else 1, rd_w(m, 1), 'm')
        if t == 1 and ks + 6 < 16 and ks >= 0:
            kn = ks + 6
            if kn % 4 == 0:
                for s_ in x_adv(): pend.append(('s', s_, None))
            for qt in range(4): pend.append(('m', ld_x(kn, qt), ('x', kn)))
        g = 1; memdone = False
        while pend and g < 3:
            kind, ins, tag = pend[0]
            if kind == 's':
                if s.sc[g] or s.mem[g]: g += 1; continue
                s.sc[g].append(ins); pend.pop(0)
            else:
                if memdone: break
                if s.sc[g] and 'm0' in s.sc[g][-1]: g += 1; continue
                s.mem[g].append(ins); vm.append(tag); pend.pop(0); memdone = True; g += 1
        s.emit(a)
    assert not pend, pend
    st.mark()
    a('s_nop 7')
    for i in range(16):
        for r in range(8): a(f'v_mul_f32 v{V_Q+8*i+r}, s{S_SC}, v{V_Q+8*i+r}')
        for r in range(4): a(f'v_cvt_pk_bf16_f32 v{V_Q+4*i+r}, v{V_Q+8*i+2*r}, v{V_Q+8*i+2*r+1}')
    a(f's_waitcnt vmcnt({wait_vm(("g",8))}) lgkmcnt(0)\ns_barrier')
    T0 = V_S + 32
    for ft in range(3):
        G = V_GU + 32*ft; U = G + 16
        a(f's_mul_i32 s{S_T}, s{S_HEAD}, 3\ns_add_u32 s{S_T}, s{S_T}, {ft}\ns_lshr_b32 s{S_T+1}, s{S_T}, 1\ns_lshl_b32 s{S_T+1}, s{S_T+1}, 10')
        a(f's_and_b32 s{S_T+2}, s{S_T}, 1\ns_lshl_b32 s{S_T+2}, s{S_T+2}, 3\ns_add_u32 s{S_T+1}, s{S_T+1}, s{S_T+2}')
        a(f's_cmp_lt_u32 s{S_T}, 86\ns_cselect_b32 s{S_T+1}, s{S_T+1}, 0x10000000')
        for r in range(16): a(f'v_cvt_pk_bf16_f32 v{T0+r}, v{G+r}, v{U+r}')
        for r in range(16): a(f'v_lshlrev_b32 v{G+r}, 16, v{T0+r}\nv_and_b32 v{U+r}, 0xffff0000, v{T0+r}')
        for r in range(16): a(f'v_mul_f32 v{G+r}, 0xbfb8aa3b, v{G+r}')
        for r in range(16): a(f'v_exp_f32 v{G+r}, v{G+r}')
        for r in range(16): a(f'v_add_f32 v{G+r}, 1.0, v{G+r}')
        for r in range(16): a(f'v_rcp_f32 v{G+r}, v{G+r}')
        a('s_nop 0')
        for r in range(8): a(f'v_cvt_pk_bf16_f32 v{T0+r}, v{G+2*r}, v{G+2*r+1}')
        for r in range(8): a(f'v_lshlrev_b32 v{G+2*r}, 16, v{T0+r}\nv_and_b32 v{G+2*r+1}, 0xffff0000, v{T0+r}')
        for r in range(16): a(f'v_mul_f32 v{G+r}, v{G+r}, v{U+r}')
        for r in range(8): a(f'v_cvt_pk_bf16_f32 v{U+r}, v{G+2*r}, v{G+2*r+1}')
        for qt in range(4):
            a(f'buffer_store_dwordx2 {vr(U+2*qt,2)}, v{V_XN}, {sr(S_H)}, s{S_T+1} offen'); vm.append(('h', 0))
            if qt < 3: a(f's_add_u32 s{S_T+1}, s{S_T+1}, {43*1024}')
    emit_group(10); emit_group(11)
    a(f'L{k}_att:')
    for f in range(8): a(rd_k(f, 0, 0))
    a(f'v_mov_b32 v{V_T}, 0x3f803f80')
    for i in range(4): a(f'v_accvgpr_write_b32 a{A_ONE+i}, v{V_T}')
    for i in range(80): a(f'v_accvgpr_write_b32 a{i+64}, 0')
    a('s_waitcnt lgkmcnt(0)')
    s = Sched(qk_mfmas(V_S, lambda qt: '0'))
    for i in range(64): s.place(f'v_accvgpr_write_b32 a{i}, 0', 'v', 0)
    s.emit(a)
    for f in range(8): a(rd_k(f, 0, 1))
    a(f's_cmp_lg_u32 s{S_RETRY}, 0\ns_cbranch_scc1 L{k}_havem')
    for qt in range(4):
        b = V_S + 8*qt; m = V_T + 2*qt
        a(f'v_max3_f32 v{m}, v{b}, v{b+1}, v{b+2}\nv_max3_f32 v{m+1}, v{b+3}, v{b+4}, v{b+5}\nv_max3_f32 v{m}, v{m}, v{b+6}, v{b+7}\nv_max_f32 v{m}, v{m}, v{m+1}')
    a(f'L{k}_redm:')
    for op in ('v_permlane16_swap_b32', 'v_permlane32_swap_b32'):
        for qt in range(4): a(f'v_mov_b32 v{V_T+2*qt+1}, v{V_T+2*qt}')
        a('s_nop 1')
        for qt in range(4): a(f'{op} v{V_T+2*qt}, v{V_T+2*qt+1}')
        a('s_nop 1')
        for qt in range(4): a(f'v_max_f32 v{V_T+2*qt}, v{V_T+2*qt}, v{V_T+2*qt+1}')
    for qt in range(4):
        for r in range(4): a(f'v_sub_f32 v{V_NM+4*qt+r}, 0, v{V_T+2*qt}')
    a(f's_cmp_lg_u32 s{S_RETRY}, 0\ns_cbranch_scc1 L{k}_att')
    a(f'L{k}_havem:')
    for i in range(32): a(f'v_add_f32 v{V_S+i}, v{V_S+i}, v{V_NM+4*(i//8)}')
    for i in range(16): a(f'v_exp_f32 v{V_S+i}, v{V_S+i}')
    a('s_nop 0')
    for i in range(8): a(f'v_cvt_pk_bf16_f32 v{V_P+i}, v{V_S+2*i}, v{V_S+2*i+1}')
    a(f's_mov_b32 s{S_CNT}, 0')
    a('s_waitcnt vmcnt(16) lgkmcnt(0)')
    st.mark()
    a('.p2align 6')
    a(f'L{k}_loop:')
    for u in range(8):
        if u == 7: a(f's_cbranch_scc1 L{k}_tail')
        phase_qk(a, u, barrier=(u % 2 == 0))
        ex = []
        if u == 6: ex = [(4, f's_add_u32 s{S_CNT}, s{S_CNT}, 1')]
        endw = 's_waitcnt vmcnt(16) lgkmcnt(0)' if u % 2 == 1 else 's_waitcnt lgkmcnt(0)'
        phase_pv(a, u, endwait=endw, extra_scalar=ex)
        if u == 6: a(f's_cmp_eq_u32 s{S_CNT}, 8')
    a(f's_branch L{k}_loop')
    a(f'L{k}_tail:')
    u = 7
    for dt in range(8):
        for jj in range(2): a(rd_v(dt, jj, u // 2, u % 2))
    sb = V_S + 32*(u % 2); pb = V_P + 16*(u % 2)
    for i in range(16, 32): a(f'v_exp_f32 v{sb+i}, v{sb+i}')
    a('s_nop 0')
    for i in range(8, 16): a(f'v_cvt_pk_bf16_f32 v{pb+i}, v{sb+2*i}, v{sb+2*i+1}')
    a('s_waitcnt lgkmcnt(0)')
    phase_pv(a, u, kreads=False, dma=False, soft=False)
    st.mark()
    a('s_nop 7')
    for qt in range(4): a(f'v_accvgpr_read_b32 v{V_T+qt}, a{A_L+4*qt}')
    a(f'v_max3_f32 v{V_T+4}, v{V_T}, v{V_T+1}, v{V_T+2}\nv_max_f32 v{V_T+4}, v{V_T+4}, v{V_T+3}')
    a(f'v_mov_b32 v{V_T+5}, 0x5f800000')
    a(f'v_cmp_nlt_f32 vcc, v{V_T+4}, v{V_T+5}')
    a(f's_nop 1\ns_cmp_lg_u64 vcc, 0\ns_cselect_b32 s{S_T}, 1, 0')
    a(f's_lshl_b32 s{S_T+1}, s{S_W}, 2\ns_add_u32 s{S_T+1}, s{S_T+1}, {LDS_FLAG}')
    a(f'v_mov_b32 v{V_T+5}, s{S_T}\nv_mov_b32 v{V_T+6}, s{S_T+1}\nds_write_b32 v{V_T+6}, v{V_T+5}')
    a(f'v_mov_b32 v{V_T+6}, {LDS_FLAG}')
    a('s_waitcnt vmcnt(0) lgkmcnt(0)\ns_barrier')
    a(f'ds_read_b128 {vr(V_T+8)}, v{V_T+6}\ns_waitcnt lgkmcnt(0)')
    a(f'v_or_b32 v{V_T+8}, v{V_T+8}, v{V_T+9}\nv_or3_b32 v{V_T+8}, v{V_T+8}, v{V_T+10}, v{V_T+11}\ns_nop 0')
    a(f'v_readfirstlane_b32 s{S_T}, v{V_T+8}\ns_andn2_b32 s{S_T}, s{S_T}, s{S_RETRY}\ns_cbranch_scc1 L{k}_maxpass')
    for qt in range(4): a(f'v_rcp_f32 v{V_T+qt}, v{V_T+qt}')
    tb = V_S
    for qt in range(4):
        a(f's_mov_b32 s{S_T}, {131072*qt}')
        for e in range(4):
            t = tb + 16*((4*qt+e) % 4)
            for r in range(8): a(f'v_accvgpr_read_b32 v{t+r}, a{A_O + 16*(2*e + r//4) + 4*qt + r%4}')
            for r in range(8): a(f'v_mul_f32 v{t+r}, v{t+r}, v{V_T+qt}')
            for r in range(4): a(f'v_cvt_pk_bf16_f32 v{t+8+r}, v{t+2*r}, v{t+2*r+1}')
            a(f'buffer_store_dwordx4 {vr(t+8)}, v{V_XN}, {sr(S_O)}, s{S_T} offen offset:{1024*e}')
    if dbg: a('s_waitcnt vmcnt(0)')
    st.mark(); st.flush(S_W, V_T)
    a(f'L{k}_end:\ns_endpgm')
    a(f'L{k}_maxpass:')
    a(f's_mov_b32 s{S_RETRY}, 1\ns_mov_b32 s{S_KO}, 0\ns_mov_b32 m0, s{S_M0}')
    for qt in range(4): a(f'v_mov_b32 v{V_T+2*qt}, 0xff800000')
    a(f'L{k}_mloop:')
    a('s_barrier')
    for i in range(4): a(dma_k(i))
    a('s_waitcnt vmcnt(0)\ns_barrier')
    for un in range(2):
        for f in range(8): a(rd_k(f, 0, un))
        a('s_waitcnt lgkmcnt(0)')
        for m in qk_mfmas(V_S, lambda qt: '0'): a(m)
        a('s_nop 7')
        for qt in range(4):
            b = V_S + 8*qt; m = V_T + 2*qt
            for r in range(0, 8, 2): a(f'v_max3_f32 v{m}, v{m}, v{b+r}, v{b+r+1}')
    a(f's_add_u32 s{S_KO}, s{S_KO}, 16384\ns_cmp_lt_u32 s{S_KO}, 0x80000\ns_cbranch_scc1 L{k}_mloop')
    a(f's_barrier\ns_mov_b32 s{S_KO}, 0\ns_mov_b32 s{S_VO}, 0')
    for gam in (8, 9, 10, 11): emit_group(gam)
    a('s_waitcnt vmcnt(24)\ns_barrier')
    a(f's_branch L{k}_redm')
    return a.text() + kd(k, 512, 256, 102), (k, 256, 256, LDS_FLAG + 64)
```

```python
from asmlib import *
def gen_k3(k='proj_kernel', D=4, dbg=False, exp=''):
    a = Asm(); kstart(a, k); st = Stamps(a, dbg, 2)
    a(f's_cmp_ge_u32 s2, 256\ns_cbranch_scc1 L{k}_end')
    st.mark()
    a('s_load_dwordx2 s[4:5], s[0:1], 0')
    a('s_load_dwordx2 s[6:7], s[0:1], 32')
    a('s_load_dwordx4 s[40:43], s[0:1], 64')
    a('s_load_dwordx2 s[44:45], s[0:1], 88')
    a('v_lshrrev_b32 v1, 6, v0')
    a('v_and_b32 v0, 63, v0')
    a('v_readfirstlane_b32 s20, v1')
    a('s_and_b32 s21, s2, 7')
    a('s_lshr_b32 s22, s2, 3')
    a('s_and_b32 s23, s22, 7')
    a('s_lshr_b32 s22, s22, 3')
    a('s_lshl_b32 s21, s21, 4')
    a('s_lshl_b32 s22, s22, 2')
    a('s_add_u32 s21, s21, s22')
    a('s_lshl_b32 s23, s23, 7')
    if 'R' in exp: a('s_mov_b32 s21, 0')
    if 'C' in exp: a('s_mov_b32 s23, 0')
    a.c('per wave k range: s24 = start kf, s25 = end kf, s26 = nkf*1024')
    a('s_mul_i32 s24, s20, 21')
    a('s_min_u32 s25, s20, 2')
    a('s_add_u32 s24, s24, s25')
    a('s_add_u32 s27, s20, 1')
    a('s_mul_i32 s25, s27, 21')
    a('s_min_u32 s27, s27, 2')
    a('s_add_u32 s25, s25, s27')
    a('s_sub_u32 s27, s20, 6')
    a('s_mul_i32 s28, s27, 22')
    a('s_mul_i32 s29, s27, 21')
    a('s_add_u32 s29, s29, 22')
    a(f's_mov_b32 s26, {128*1024}\ns_mov_b32 s27, {WS_O}')
    a('s_cmp_ge_u32 s20, 6')
    a('s_cselect_b32 s24, s28, s24')
    a('s_cselect_b32 s25, s29, s25')
    a(f's_cselect_b32 s26, {43*1024}, s26')
    a(f's_cselect_b32 s27, {WS_H}, s27')
    a('s_mul_i32 s28, s21, s26')
    a('s_add_u32 s27, s27, s28')
    a('s_waitcnt lgkmcnt(0)')
    a('s_cmp_ge_u32 s20, 6')
    a('s_cselect_b32 s6, s40, s6')
    a('s_cselect_b32 s7, s41, s7')
    a('s_add_u32 s8, s44, s27\ns_addc_u32 s9, s45, 0\ns_lshl_b32 s10, s26, 2\ns_mov_b32 s11, 0x20000')
    a('s_add_u32 s12, s6, s23\ns_addc_u32 s13, s7, 0\ns_lshl_b32 s14, s25, 15\ns_sub_u32 s14, s14, s23\ns_mov_b32 s15, 0x20000')
    srd(a, 16, 4, XN_BYTES)
    srd(a, 32, 42, XN_BYTES)
    a('v_lshlrev_b32 v2, 4, v0')
    for rt in range(1, 4): a(f'v_add_u32 v{2+rt}, s26, v{1+rt}')
    a('v_lshrrev_b32 v10, 3, v0')
    a('v_and_b32 v11, 6, v10')
    a('v_and_b32 v12, 7, v0')
    a('v_xor_b32 v11, v11, v12')
    a('v_lshlrev_b32 v11, 4, v11')
    a('v_lshl_add_u32 v6, v10, 10, v11')
    for i in range(1, 4): a(f'v_add_u32 v{6+i}, {7168*i}, v6')
    a('v_lshrrev_b32 v10, 2, v0')
    a('v_and_b32 v11, 6, v10')
    a('v_bfe_u32 v12, v0, 1, 1')
    a('v_xor_b32 v11, v11, v12')
    a('v_lshlrev_b32 v11, 4, v11')
    a('v_lshl_add_u32 v11, v10, 7, v11')
    a('v_and_b32 v12, 1, v0')
    a('v_lshl_add_u32 v11, v12, 3, v11')
    a('s_lshl_b32 s30, s20, 14')
    a('v_add_u32 v16, s30, v11')
    for ct in range(1, 4): a(f'v_xor_b32 v{16+ct}, {32*ct}, v16')
    a('s_lshl_b32 s31, s21, 4\ns_lshl_b32 s36, s20, 3\ns_add_u32 s31, s31, s36')
    a('v_lshrrev_b32 v10, 3, v0\nv_add_u32 v10, s31, v10\nv_lshlrev_b32 v10, 10, v10')
    a('v_and_b32 v11, 7, v0\nv_lshl_add_u32 v10, v11, 4, v10\nv_add_u32 v20, s23, v10')
    a('buffer_load_dwordx4 v[24:27], v20, s[16:19], 0 offen')
    ACC = 64; ACT = 128; WF = 32
    a('s_mov_b32 s37, s24\ns_mov_b32 s46, 0x10000000')
    def loads_dma(d):
        a(f's_add_u32 s36, s30, {4096*d}\ns_mov_b32 m0, s36\ns_lshl_b32 s38, s37, 15')
        for i in range(4):
            if 'w' in exp: a(f'buffer_load_dwordx4 v{6+i}, s[12:15], s46 offen offset:{1024*i} lds')
            else: a(f'buffer_load_dwordx4 v{6+i}, s[12:15], s38 offen offset:{1024*i} lds')
        a('s_lshl_b32 s39, s37, 10\ns_cmp_lt_u32 s37, s25\ns_cselect_b32 s39, s39, 0x10000000\ns_add_u32 s37, s37, 1')
    def load_act(d, rt):
        a(f'buffer_load_dwordx4 {vr(ACT+16*d+4*rt)}, v{2+rt}, s[8:11], s{46 if "a" in exp else 39} offen')
    for d in range(D):
        loads_dma(d)
        for rt in range(4): load_act(d, rt)
    for i in range(64): a(f'v_mov_b32 v{ACC+i}, 0')
    st.mark()
    a(f'L{k}_loop:')
    for d in range(D):
        a(f's_waitcnt vmcnt({8*(D-1)})')
        for ct in range(4):
            for jj in range(2):
                a(f'ds_read_b64_tr_b16 v[{WF+4*ct+2*jj}:{WF+4*ct+2*jj+1}], v{16+ct} offset:{4096*d+2048*jj}')
        a('s_waitcnt lgkmcnt(0)')
        loads_dma(d)
        for rt in range(4):
            for ct in (range(4) if rt % 2 == 0 else range(3, -1, -1)):
                acc = vr(ACC+16*ct+4*rt)
                a(f'v_mfma_f32_16x16x32_bf16 {acc}, {vr(WF+4*ct)}, {vr(ACT+16*d+4*rt)}, {acc}')
            load_act(d, rt)
        a('s_add_u32 s24, s24, 1\ns_cmp_ge_u32 s24, s25')
        a(f's_cbranch_scc1 L{k}_done' if d < D-1 else f's_cbranch_scc0 L{k}_loop')
    a(f'L{k}_done:')
    st.mark()
    a('s_waitcnt vmcnt(0)')
    a('v_and_b32 v10, 15, v0\nv_lshrrev_b32 v11, 4, v0\nv_and_b32 v12, 7, v0\nv_xor_b32 v11, v11, v12')
    a('v_lshlrev_b32 v11, 4, v11\nv_lshl_add_u32 v11, v10, 8, v11\nv_add_u32 v11, s30, v11')
    for ct in range(1, 4): a(f'v_xor_b32 v{11+ct}, {64*ct}, v11')
    a('s_nop 4')
    for rt in range(4):
        for ct in range(4):
            a(f'ds_write_b128 v{11+ct}, {vr(ACC+16*ct+4*rt)} offset:{4096*rt}')
    a('v_lshrrev_b32 v10, 3, v0\nv_and_b32 v16, 7, v0\nv_lshlrev_b32 v16, 1, v16\nv_xor_b32 v16, v16, v10')
    a('v_lshlrev_b32 v16, 4, v16\nv_lshl_add_u32 v16, v10, 8, v16\ns_lshl_b32 s36, s20, 11\nv_add_u32 v16, s36, v16')
    a('v_xor_b32 v17, 16, v16\nv_add_u32 v18, 0x10000, v16\nv_add_u32 v19, 0x10000, v17')
    a('s_waitcnt lgkmcnt(0)\ns_barrier')
    for p in range(8):
        for h in range(2):
            a(f'ds_read_b128 {vr(64+8*p+4*h)}, v{16+h+(2 if p >= 4 else 0)} offset:{16384*(p%4)}')
    a('s_waitcnt lgkmcnt(8)')
    for i in range(8):
        a(f'v_add_f32 v{64+i}, v{64+i}, v{72+i}\nv_add_f32 v{80+i}, v{80+i}, v{88+i}')
    a('s_waitcnt lgkmcnt(0)')
    for i in range(8):
        a(f'v_add_f32 v{96+i}, v{96+i}, v{104+i}\nv_add_f32 v{112+i}, v{112+i}, v{120+i}\nv_add_f32 v{64+i}, v{64+i}, v{80+i}')
    for i in range(8): a(f'v_add_f32 v{64+i}, v{64+i}, v{96+i}')
    for i in range(8): a(f'v_cvt_pk_bf16_f32 v{72+i}, v{64+i}, v{112+i}')
    for i in range(8):
        a(f'v_lshlrev_b32 v{64+i}, 16, v{72+i}\nv_and_b32 v{112+i}, 0xffff0000, v{72+i}')
    for i in range(8): a(f'v_mul_f32 v{80+i}, 0xbfb8aa3b, v{112+i}')
    for i in range(8): a(f'v_exp_f32 v{80+i}, v{80+i}')
    for i in range(8): a(f'v_add_f32 v{80+i}, 1.0, v{80+i}')
    for i in range(8): a(f'v_rcp_f32 v{80+i}, v{80+i}')
    for i in range(8): a(f'v_mul_f32 v{80+i}, v{112+i}, v{80+i}')
    for i in range(4): a(f'v_cvt_pk_bf16_f32 v{72+i}, v{80+2*i}, v{81+2*i}')
    for i in range(4):
        a(f'v_lshlrev_b32 v{80+2*i}, 16, v{72+i}\nv_and_b32 v{81+2*i}, 0xffff0000, v{72+i}')
    for i in range(8): a(f'v_mul_f32 v{80+i}, v{80+i}, v{64+i}')
    for i in range(4): a(f'v_cvt_pk_bf16_f32 v{72+i}, v{80+2*i}, v{81+2*i}')
    for i in range(4):
        a(f'v_lshlrev_b32 v{80+2*i}, 16, v{72+i}\nv_and_b32 v{81+2*i}, 0xffff0000, v{72+i}')
        a(f'v_lshlrev_b32 v{88+2*i}, 16, v{24+i}\nv_and_b32 v{89+2*i}, 0xffff0000, v{24+i}')
    for i in range(8): a(f'v_add_f32 v{80+i}, v{80+i}, v{88+i}')
    for i in range(4): a(f'v_cvt_pk_bf16_f32 v{72+i}, v{80+2*i}, v{81+2*i}')
    a('buffer_store_dwordx4 v[72:75], v20, s[32:35], 0 offen')
    if dbg: a('s_waitcnt vmcnt(0)')
    st.mark(); st.flush(20, 2)
    a(f'L{k}_end:\ns_endpgm')
    return a.text() + kd(k, ACT+16*D, ACT+16*D, 102 if dbg else 64), (k, 256, 512, 131072)
```

```python
import sys
from asmlib import *
HDR = open('cdna_kernels/' + NAME + '.s.ref').read().split('; Override launch geometry')[0]
def assemble(parts, path):
    s = HDR
    for _, (k, grid, block, lds) in parts:
        s += f'; @launch kernel={k} grid=({grid},1,1) block=({block},1,1) lds={lds}\n'
    s += '.amdgcn_target "amdgcn-amd-amdhsa--gfx950"\n.text\n'
    for t, _ in parts: s += t
    open(path, 'w').write(s)
if __name__ == '__main__':
    from k1 import gen_k1
    from k2 import gen_k2
    from k3 import gen_k3
    assemble([gen_k1(dbg=True), gen_k2(dbg=True), gen_k3(dbg=True)], 'full_dbg.s')
    assemble([gen_k1(), gen_k2(), gen_k3()], 'full.s')
```

```python
from gen import *
from k1 import gen_k1
from k2 import gen_k2
from k3 import gen_k3
def nop():
    a=Asm(); kstart(a,'nop_kernel'); a('s_endpgm')
    return a.text()+kd('nop_kernel',8,8,16)
n=nop(); L=('nop_kernel',256,64,0)
k1,k2,k3=gen_k1(),gen_k2(),gen_k3()
assemble([k1,k2,k3],'gapA.s')
assemble([(n,L),('',L),('',L),('',L),k1,k2,k3],'gapB.s')
assemble([k1,k2,(n,L),('',L),('',L),('',L),k3],'gapC.s')
assemble([k1,k2,k3,(n,L),('',L),('',L),('',L)],'gapD.s')
```

```python
NAME = 'recurrent_scan__gqa_block_cached__glu_gated_glu__prompt'

class Asm:
    def __init__(self):
        self.L = []
    def __call__(self, s):
        for ln in s.split('\n'):
            ln = ln.strip()
            if ln:
                self.L.append(ln if ln.endswith(':') else '    ' + ln)
    def c(self, s):
        self.L.append('    ; ' + s)
    def text(self):
        return '\n'.join(self.L) + '\n'

def vr(b, n=4): return f'v[{b}:{b+n-1}]' if n > 1 else f'v{b}'
def ar(b, n=4): return f'a[{b}:{b+n-1}]' if n > 1 else f'a{b}'
def sr(b, n=4): return f's[{b}:{b+n-1}]' if n > 1 else f's{b}'

def kstart(a, k):
    a.L.append(f'.globl {k}')
    a.L.append('.p2align 8')
    a.L.append(f'.type {k},@function')
    a.L.append(f'{k}:')

def kd(k, vg, acc, sg=102):
    return f'''.section .rodata,"a"
.p2align 6
.amdhsa_kernel {k}
  .amdhsa_next_free_vgpr {vg}
  .amdhsa_next_free_sgpr {sg}
  .amdhsa_accum_offset {acc}
  .amdhsa_group_segment_fixed_size 0
  .amdhsa_kernarg_size 96
  .amdhsa_user_sgpr_count 2
  .amdhsa_user_sgpr_kernarg_segment_ptr 1
  .amdhsa_system_sgpr_workgroup_id_x 1
.end_amdhsa_kernel
.text
'''

def srd(a, d, base, nrec, add=None):
    if add is None:
        a(f's_mov_b32 s{d}, s{base}\ns_mov_b32 s{d+1}, s{base+1}')
    else:
        a(f's_add_u32 s{d}, s{base}, {add}\ns_addc_u32 s{d+1}, s{base+1}, 0')
    a(f's_mov_b32 s{d+2}, {nrec}\ns_mov_b32 s{d+3}, 0x20000')

WS_XN = 0
WS_H = 2 << 20
WS_O = 8 << 20
WS_DBG = 48 << 20
WS_FLAG = 24 << 20
FL_H = 0
FL_O = 4096
FL_P = 4096 + 16384
FLAG_BYTES = 4096 + 16384 + 32768
WS_PART = 25 << 20
PART_BYTES = 64 * 4 * 3 * 16384
XN_BYTES = 2048 * 512 * 2
H_BYTES = 128 * 43 * 1024
O_BYTES = 128 * 128 * 1024

class Stamps:
    def __init__(self, a, on, kidx, n=12):
        self.a = a; self.on = on; self.kidx = kidx; self.n = 0
    def mark(self):
        if not self.on: return
        i = self.n; self.n += 1
        assert i < 12
        self.a(f's_memrealtime s[96:97]\ns_memtime s[98:99]\ns_waitcnt lgkmcnt(0)\ns_mov_b32 s{64+2*i}, s96\ns_mov_b32 s{65+2*i}, s98')
    def flush(self, swave, vt):
        if not self.on: return
        a = self.a
        a('s_load_dwordx2 s[96:97], s[0:1], 88\ns_waitcnt lgkmcnt(0)')
        a(f's_add_u32 s96, s96, {WS_DBG + self.kidx*0x40000}\ns_addc_u32 s97, s97, 0\ns_mov_b32 s98, 0x40000\ns_mov_b32 s99, 0x20000')
        a(f's_lshl_b32 s100, s2, 10\ns_lshl_b32 s101, s{swave}, 7\ns_add_u32 s100, s100, s101')
        a(f'v_mov_b32 v{vt+1}, 0')
        for i in range(2*self.n):
            a(f'v_mov_b32 v{vt}, s{64+i}\nbuffer_store_dword v{vt}, v{vt+1}, s[96:99], s100 offen offset:{4*i}\ns_waitcnt vmcnt(0)')
```

```python
import sys
from asmlib import *
HDR = open('cdna_kernels/' + NAME + '.s.ref').read().split('; Override launch geometry')[0]
def assemble(parts, path):
    s = HDR
    for _, (k, grid, block, lds) in parts:
        s += f'; @launch kernel={k} grid=({grid},1,1) block=({block},1,1) lds={lds}\n'
    s += '.amdgcn_target "amdgcn-amd-amdhsa--gfx950"\n.text\n'
    for t, _ in parts: s += t
    open(path, 'w').write(s)
def build(path, dbg, k1o={}, k2o={}):
    from k1 import gen_k1
    from k2 import gen_k2
    o = dict(code_label='attn_kernel', code_bytes='Lattn_kernel_codeend-attn_kernel'); o.update(k1o)
    assemble([gen_k1(dbg=dbg, **o), gen_k2(dbg=dbg, **k2o)], path)
if __name__ == '__main__':
    build('full_dbg.s', True); build('full.s', False)
```

```python
from asmlib import *
def gen_k1(k='ln_kernel', dbg=False, pre=1, kv=0, code_label=None, code_bytes=0):
    a = Asm(); kstart(a, k); st = Stamps(a, dbg, 0)
    a(f's_cmp_ge_u32 s2, 256\ns_cbranch_scc1 L{k}_end')
    st.mark()
    if dbg: a('v_lshrrev_b32 v1, 6, v0\ns_nop 0\nv_readfirstlane_b32 s20, v1')
    a('s_load_dwordx2 s[4:5], s[0:1], 0')
    a('s_load_dwordx2 s[6:7], s[0:1], 88')
    a('s_load_dwordx2 s[16:17], s[0:1], 24')
    a('s_load_dwordx4 s[24:27], s[0:1], 48')
    a('s_load_dwordx4 s[32:35], s[0:1], 8')
    a.c('row = wg*8 + tid>>4 ; cc = tid&15 ; g = cc&3 ; ks0 = cc>>2')
    a('v_lshrrev_b32 v1, 4, v0')
    a('s_lshl_b32 s3, s2, 3')
    a('v_add_u32 v1, s3, v1')
    a('v_and_b32 v2, 3, v0')
    a('v_bfe_u32 v3, v0, 2, 2')
    a('v_lshlrev_b32 v4, 10, v1')
    a('v_lshl_add_u32 v4, v3, 6, v4')
    a('v_lshl_add_u32 v4, v2, 3, v4')
    a('v_lshrrev_b32 v5, 4, v1')
    a('v_lshlrev_b32 v5, 14, v5')
    a('v_lshl_add_u32 v5, v3, 10, v5')
    a('v_lshl_add_u32 v5, v2, 8, v5')
    a('v_and_b32 v6, 15, v1')
    a('v_lshl_add_u32 v5, v6, 4, v5')
    a('s_waitcnt lgkmcnt(0)')
    srd(a, 8, 4, XN_BYTES)
    srd(a, 12, 6, XN_BYTES, WS_XN)
    for i in range(4):
        for jj in range(2):
            a(f'buffer_load_dwordx2 v[{8+4*i+2*jj}:{9+4*i+2*jj}], v4, s[8:11], 0 offen offset:{256*i+32*jj}')
    srd(a, 28, 6, FLAG_BYTES, WS_FLAG)
    a('s_lshl_b32 s3, s2, 9\nv_lshlrev_b32 v7, 2, v0\nv_mov_b32 v30, 0')
    a('buffer_store_dword v30, v7, s[28:31], s3 offen')
    extra = 1
    def prefetch():
        nonlocal extra
        a(f's_mov_b32 s18, {512*8192}\ns_mov_b32 s19, 0x20000')
        a('s_and_b32 s21, s2, 7\ns_lshr_b32 s22, s2, 3')
        a('s_lshl_b32 s3, s22, 17\ns_lshl_b32 s23, s21, 10\ns_add_u32 s3, s3, s23')
        a('v_lshrrev_b32 v28, 3, v0\nv_and_b32 v29, 7, v0\nv_lshlrev_b32 v28, 13, v28\nv_lshl_add_u32 v28, v29, 7, v28')
        a('buffer_load_dword v31, v28, s[16:19], s3 offen')
        a('v_lshrrev_b32 v28, 6, v0\ns_nop 0\nv_readfirstlane_b32 s23, v28')
        a('s_cmp_eq_u32 s23, 0\ns_cselect_b32 s24, s24, s26\ns_cselect_b32 s25, s25, s27')
        a('s_cselect_b32 s32, s32, s34\ns_cselect_b32 s33, s33, s35')
        a(f's_mov_b32 s26, {512*2752}\ns_mov_b32 s27, 0x20000\ns_mov_b32 s34, {32*2048*256}\ns_mov_b32 s35, 0x20000')
        a(f's_mul_i32 s3, s22, {16*2752}\ns_mul_i32 s23, s21, 384\ns_add_u32 s3, s3, s23\ns_movk_i32 s23, 2752')
        a('v_bfe_u32 v28, v0, 2, 4\nv_and_b32 v29, 3, v0\nv_mul_u32_u24 v29, 124, v29\nv_mad_u32_u24 v28, v28, s23, v29')
        a('buffer_load_dword v31, v28, s[24:27], s3 offen')
        extra += 2
        if kv:
            a(f's_lshl_b32 s3, s21, 2\ns_and_b32 s23, s22, 3\ns_add_u32 s3, s3, s23\ns_lshl_b32 s3, s3, 19\ns_lshr_b32 s23, s22, 2\ns_mul_i32 s23, s23, {kv*128}\ns_add_u32 s3, s3, s23')
            a(f'v_and_b32 v28, {kv-1}, v0\nv_lshlrev_b32 v28, 7, v28')
            a('buffer_load_dword v31, v28, s[32:35], s3 offen')
            extra += 1
        if code_label:
            a(f's_getpc_b64 s[16:17]\nL{k}_pc:\ns_add_u32 s16, s16, {code_label}-L{k}_pc\ns_addc_u32 s17, s17, 0\ns_mov_b32 s18, {code_bytes}')
            a('s_lshl_b32 s3, s22, 11\nv_and_b32 v28, 15, v0\nv_lshlrev_b32 v28, 7, v28')
            a('buffer_load_dword v31, v28, s[16:19], s3 offen')
            extra += 1
    if pre == 1: prefetch()
    for r in range(16):
        if r % 2 == 0: a(f's_waitcnt vmcnt({extra + 7 - r//2})')
        a(f'v_lshlrev_b32 v{32+2*r}, 16, v{8+r}')
        a(f'v_and_b32 v{33+2*r}, 0xffff0000, v{8+r}')
    def tree(dst, regs):
        regs = list(regs); t = 64
        while len(regs) > 1:
            nxt = []
            for i in range(0, len(regs), 2):
                a(f'v_add_f32 v{t}, v{regs[i]}, v{regs[i+1]}'); nxt.append(t); t += 1
            regs = nxt
        a(f'v_mov_b32 v{dst}, v{regs[0]}')
    def rowred(r):
        for sh in (8, 4, 2, 1):
            a('s_nop 1')
            a(f'v_add_f32_dpp v{r}, v{r}, v{r} row_ror:{sh} row_mask:0xf bank_mask:0xf')
    tree(24, range(32, 64)); rowred(24)
    a('v_mul_f32 v24, 0x3b000000, v24')
    for i in range(4): a(f'v_mov_b32 v{26+i}, 0')
    for r in range(32):
        a(f'v_sub_f32 v{64+r}, v{32+r}, v24')
    for r in range(32):
        a(f'v_fmac_f32 v{26+r%4}, v{64+r}, v{64+r}')
    a('v_add_f32 v26, v26, v27\nv_add_f32 v28, v28, v29\nv_add_f32 v26, v26, v28')
    rowred(26)
    a('v_mul_f32 v26, 0x3b000000, v26')
    a('v_cvt_pk_bf16_f32 v25, v24, v26')
    a('v_lshlrev_b32 v24, 16, v25')
    a('v_and_b32 v26, 0xffff0000, v25')
    a('v_add_f32 v26, 0x3727c5ac, v26')
    a('v_cvt_pk_bf16_f32 v26, v26, v26\nv_and_b32 v26, 0xffff0000, v26')
    a('v_sqrt_f32 v26, v26\ns_nop 0')
    a('v_cvt_pk_bf16_f32 v26, v26, v26\nv_and_b32 v26, 0xffff0000, v26')
    a('v_rcp_f32 v27, v26')
    for r in range(32):
        a(f'v_sub_f32 v{32+r}, v{32+r}, v24')
    for r in range(16):
        a(f'v_cvt_pk_bf16_f32 v{8+r}, v{32+2*r}, v{33+2*r}')
    for r in range(16):
        a(f'v_lshlrev_b32 v{32+2*r}, 16, v{8+r}')
        a(f'v_and_b32 v{33+2*r}, 0xffff0000, v{8+r}')
    for r in range(32):
        a(f'v_mul_f32 v{64+r}, v{32+r}, v27')
    for r in range(32):
        a(f'v_fma_f32 v{32+r}, -v{64+r}, v26, v{32+r}')
    for r in range(32):
        a(f'v_fmac_f32 v{64+r}, v{32+r}, v27')
    for r in range(16):
        a(f'v_cvt_pk_bf16_f32 v{8+r}, v{64+2*r}, v{65+2*r}')
    for i in range(4):
        a(f's_movk_i32 s3, {4096*i}')
        a(f'buffer_store_dwordx4 v[{8+4*i}:{11+4*i}], v5, s[12:15], s3 offen')
    if dbg: a('s_waitcnt vmcnt(0)')
    st.mark(); st.flush(20, 2)
    if pre == 2: prefetch()
    a(f'L{k}_end:\ns_endpgm')
    return a.text() + kd(k, 96, 96, 102 if dbg else 40), (k, 256, 128, 0)
```

```python
from asmlib import *
import struct
def f2u(x): return struct.unpack('<I', struct.pack('<f', x))[0]
QSCALE = f2u(1.4426950408889634 / (128 ** 0.5))

V_DK = 1
V_DV = 5
V_F = 7
V_XN = 9
V_DQ = 10
V_RK = 10
V_DG = 14
V_RQ = 17
V_RG = 21
V_DW = 14
V_RWK = 160
V_RV = 24
V_Q = 32
V_S = 96
V_GU = 160
V_P = 160
V_NM = 192
V_T = 176
V_AB = 32
V_AS = 96
V_PT = 168
A_O = 0
A_L = 128
A_ONE = 144
A_K = 192
A_V = 224
A_WA = 96
A_XB = 128
A_OA = 0
A_W = 192
def hfrag(ks, rt):
    return vr(208 + 8*ks + 4*rt) if ks < 6 else ar(148 + 8*(ks-6) + 4*rt)
S_K = 8; S_V = 12; S_WQ = 16; S_GU = 20; S_XN = 24; S_H = 28; S_O = 32
S_WD = 16; S_WO = 20; S_ACT = 24; S_FL = 28
S_W = 36; S_HEAD = 37; S_QB = 38
S_M0 = 39
S_MG = 40
S_XO = 41
S_KO = 45; S_VO = 46
S_CNT = 47; S_RETRY = 48; S_T = 49
S_EQ = 54; S_EX = 55
S_SPL = 40; S_RT0 = 41; S_C = 42; S_WOF = 43; S_AOF = 44; S_TILE = 54; S_PW = 55
S_PX = 56; S_PWO = 58; S_PWD = 60; S_POUT = 62
S_SC = 6
S_IB = 92
S_CD = 88
S_CO = 3
S_AJ = 6; S_WJ = 7
V_ONES = 252
S_PF = 51
V_PF = 20
OV = 18
LDS_V = 65536
LDS_FLAG = 0
LDS_BYTES = 163840
V_RWE = 1
SPIN = 1 << 18

OPT = dict(qk='C')
def mfma(d, a_, b_, c): return f'v_mfma_f32_16x16x32_bf16 {d}, {a_}, {b_}, {c}'

class NoSt:
    def mark(self): pass

class Sched:
    def __init__(self, mf):
        self.mf = mf; n = len(mf)
        self.sc = [[] for _ in range(n)]; self.mem = [[] for _ in range(n)]; self.va = [[] for _ in range(n)]
        self.load = [0] * n; self.tags = []
    def put(self, g, ins, kind, cost=1):
        (self.mem if kind == 'm' else self.va)[g].append(ins); self.load[g] += cost
    def place(self, ins, kind, lo, hi=None, cost=1):
        n = len(self.mf); hi = n - 1 if hi is None else min(hi, n - 1)
        for g in range(lo, hi + 1):
            if self.load[g] + cost <= 2:
                self.put(g, ins, kind, cost); return g
        g = min(range(lo, hi + 1), key=lambda x: self.load[x])
        self.put(g, ins, kind, cost); return g
    def scalar(self, g, ins, hi=None):
        n = len(self.mf); hi = g if hi is None else min(hi, n - 1)
        for x in range(g, hi + 1):
            if not self.sc[x]:
                self.sc[x].append(ins); return x
        self.sc[g].append(ins); return g
    def emit(self, a):
        for g, m in enumerate(self.mf):
            a(m)
            for x in self.sc[g] + self.mem[g] + self.va[g]: a(x)

def cost(ins): return 2 if ins.startswith(('v_exp', 'v_rcp')) else 1

class VM:
    def __init__(self): self.q = []
    def add(self, tag): self.q.append(tag)
    def wait(self, *tags):
        idx = max(i for i, t in enumerate(self.q) if t in tags)
        n = len(self.q) - 1 - idx
        assert n <= 63
        return n
    def count(self, tag): return sum(1 for t in self.q if t == tag)

def dma_k(i): return f'buffer_load_dwordx4 v{V_DK+i}, {sr(S_K)}, s{S_KO} offen offset:{1024*i} lds'
def dma_v(i): return f'buffer_load_dwordx4 v{V_DV+(i&1)}, {sr(S_V)}, s{S_VO} offen offset:{1024*i} lds'
def dma_w(i, srd_): return f'buffer_load_dwordx4 v{V_DW+i}, {sr(srd_)}, s{S_WOF} offen offset:{1024*i} lds'
def rd_k(f, t, un):
    ds, kvb = f >> 1, f & 1
    return f'ds_read_b128 {ar(A_K+4*f)}, v{V_RK+ds} offset:{(t%4)*16384 + un*8192 + kvb*4096}'
def rd_v(dt, jj, t, un):
    return f'ds_read_b64_tr_b16 {ar(A_V+4*dt+2*jj,2)}, v{V_RV+dt} offset:{((t+1)%4)*16384 + un*8192 + jj*4096}'

def qk_mfmas(sb, first_c):
    mf = []
    for n in range(32):
        if OPT['qk'] == 'Q':
            qt = n // 8; ds = (n % 8) // 2; kvb = n % 2 if ds % 2 == 0 else 1 - n % 2; head = ds == 0
        else:
            qt = n // 8; ds = n % 4 if (n // 4) % 2 == 0 else 3 - n % 4; kvb = (n // 4) % 2 if qt % 2 == 0 else 1 - (n // 4) % 2; head = n % 4 == 0
        s = vr(sb + 8*qt + 4*kvb)
        c = first_c(qt) if head else s
        mf.append(mfma(s, ar(A_K + 4*(2*ds+kvb)), vr(V_Q + 16*qt + 4*ds), c))
    return mf
def pv_mfmas(pb, zero=False):
    mf = []
    for hq in range(2):
        for n in range(16):
            dt = n // 2; qt = 2*hq + (n % 2 if dt % 2 == 0 else 1 - n % 2)
            o = ar(A_O + 16*dt + 4*qt)
            mf.append(mfma(o, ar(A_V + 4*dt), vr(pb + 4*qt), '0' if zero else o))
        for qt in (2*hq, 2*hq+1):
            l = ar(A_L + 4*qt)
            mf.append(mfma(l, ar(A_ONE), vr(pb + 4*qt), '0' if zero else l))
    return mf

def softmax_fill(s, sb, pb, e0, gaps):
    for i, g in enumerate(gaps):
        r = sb + e0 + i
        s.put(g, f'v_exp_f32 v{r}, v{r}', 'v', 2)
    return [(gaps[i] + 1, f'v_cvt_pk_bf16_f32 v{pb + (e0+i)//2}, v{sb+e0+i-1}, v{sb+e0+i}') for i in range(1, 16, 2)]

def bg_fill(s, bg, vm, lo, hi, every=4, nextm=0):
    g = lo; vgap = -1
    while bg and g <= hi:
        kind, ins, tag = bg[0]
        if kind != 'v' and vgap == g: g += 1; continue
        if kind == 's':
            if s.sc[g]: g += 1; continue
            s.sc[g].append(ins); bg.pop(0)
            if 'm0' in ins: g += 1
        elif kind == 'm':
            if s.load[g] >= 2 or g < nextm: g += 1; continue
            s.put(g, ins, 'm'); vm.add(tag); bg.pop(0)
            s.tags.append((g, len(s.tags), tag)); vm.q[len(vm.q)-len(s.tags):] = [t for _, _, t in sorted(s.tags)]
            nextm = g + every; g += 1
        else:
            if s.load[g] + cost(ins) > 2: g += 1; continue
            s.put(g, ins, 'v', cost(ins)); bg.pop(0); vgap = g
    return nextm

def phase_qk(a, u, barrier, extra=None):
    s = Sched(qk_mfmas(V_S + 32*((u+1) % 2), lambda qt: vr(V_NM + 4*qt)))
    cv = softmax_fill(s, V_S + 32*(u % 2), V_P + 16*(u % 2), 16, [2*i for i in range(16)])
    if barrier: s.scalar(0, 's_barrier')
    t, un = u // 2, u % 2
    cvg = set(g for g, _ in cv)
    q = [(dt, jj) for dt in range(8) for jj in range(2)]
    g = 1
    while q:
        for _ in range(1 if g in cvg else 2):
            if q:
                dt, jj = q.pop(0); s.put(g, rd_v(dt, jj, t, un), 'm')
        g += 2
    for g, ins in cv: s.place(ins, 'v', g)
    s.scalar(31, 's_waitcnt lgkmcnt(0)')
    if extra: extra(s)
    s.emit(a)

def phase_pv(a, u, kreads=True, dma=True, soft=True, endwait=None, extra=None, zero=False):
    s = Sched(pv_mfmas(V_P + 16*(u % 2), zero))
    n = len(s.mf)
    cv = []
    if soft:
        cv = softmax_fill(s, V_S + 32*((u+1) % 2), V_P + 16*((u+1) % 2), 0, [1 + 2*i + (1 if i >= 8 else 0) for i in range(16)])
    if kreads:
        t, un = (u+2) // 2, u % 2
        for f in range(8): s.place(rd_k(f, t, un), 'm', 2*f)
    if dma:
        slot = (u // 2 + 4) % 4
        if u % 2 == 0:
            s.scalar(15, f's_add_u32 m0, s{S_M0}, {slot*16384}', 17)
            for i in range(4): g = s.place(dma_k(i), 'm', 19 + 4*i)
            s.scalar(g + 1, f's_add_u32 s{S_KO}, s{S_KO}, 16384', n - 2)
        else:
            s.scalar(15, f's_add_u32 m0, s{S_M0}, {LDS_V + slot*16384}', 17)
            for i in range(4): g = s.place(dma_v(i), 'm', 19 + 4*i)
            s.scalar(g + 1, f's_add_u32 s{S_VO}, s{S_VO}, 16384', n - 2)
    for g, ins in cv: s.place(ins, 'v', g)
    if extra: extra(s)
    if endwait: s.scalar(n - 1, endwait() if callable(endwait) else endwait)
    s.emit(a)

def poll(a, lab, soff, slp=0):
    a(f's_mov_b32 s{S_T}, {SPIN}')
    a(f'{lab}:')
    if slp: a(f's_sleep {slp}')
    a(f'buffer_load_dword v{V_F+1}, v{V_F}, {sr(S_FL)}, {soff} offen sc1')
    a(f's_sub_u32 s{S_T}, s{S_T}, 1\ns_cbranch_scc1 {lab}_x')
    a(f's_waitcnt vmcnt(0)\nv_cmp_eq_u32 vcc, 0, v{V_F+1}\ns_nop 1\ns_cbranch_vccnz {lab}')
    a(f'{lab}_x:')

def setflag(a, soff, vt):
    a(f'v_mov_b32 v{vt}, 1\nv_mov_b32 v{vt+1}, 0\ns_mov_b64 exec, 1')
    a(f'buffer_store_dword v{vt}, v{vt+1}, {sr(S_FL)}, {soff} offen sc1')
    a('s_mov_b64 exec, -1')

def gen_k2(k='attn_kernel', dbg=False, defer=3, rot=2, oflag=5, NB=4, srot=2, pk=8, alead=10, dfr=16, sev=4, pkd=16, bearly=28, rsd=20, amin=32, wmin=32, slp=0, slp2=0, qk='C', pev=4, npeel=4, pfg=25, hsp=(0,0,0,2,0,2,0,2), ch2=1, marks='start,gemm,loop,att,e1,ook,send,pp,end'.split(','), exp=''):
    a = Asm(); kstart(a, k); st0 = Stamps(a, dbg, 1)
    class ST:
        def mark(self, n):
            if n in marks: st0.mark()
        def flush(self, *x): st0.flush(*x)
    st = ST(); OPT['qk'] = qk
    a(f's_cmp_ge_u32 s2, 256\ns_cbranch_scc1 L{k}_end')
    a(f's_mov_b32 s{S_RETRY}, 0')
    st.mark('start')
    a(f'L{k}_start:')
    a('s_load_dwordx2 s[16:17], s[0:1], 24')
    a('s_load_dwordx4 s[20:23], s[0:1], 48')
    a('s_load_dwordx2 s[4:5], s[0:1], 88')
    a('s_load_dwordx4 s[8:11], s[0:1], 8')
    a(f's_load_dwordx2 s[{S_PX}:{S_PX+1}], s[0:1], 0')
    a(f's_load_dwordx2 s[{S_PWO}:{S_PWO+1}], s[0:1], 32')
    a(f's_load_dwordx4 s[{S_PWD}:{S_PWD+3}], s[0:1], 64')
    a('v_lshrrev_b32 v1, 6, v0\nv_and_b32 v0, 63, v0')
    a(f'v_readfirstlane_b32 s{S_W}, v1')
    a(f's_and_b32 s{S_HEAD}, s2, 7\ns_lshl_b32 s{S_HEAD}, s{S_HEAD}, 2\ns_bfe_u32 s{S_T}, s2, 0x20003\ns_add_u32 s{S_HEAD}, s{S_HEAD}, s{S_T}')
    a(f's_lshr_b32 s{S_QB}, s2, 5')
    if rot == 1: a(f's_lshl_b32 s{S_T}, s{S_T}, 1\ns_add_u32 s{S_EQ}, s{S_T}, s{S_QB}\ns_and_b32 s{S_EQ}, s{S_EQ}, 7')
    elif rot == 2: a(f's_and_b32 s{S_EQ}, s{S_T}, 2\ns_lshl_b32 s{S_EQ}, s{S_EQ}, 1')
    elif rot == 3: a(f's_lshl_b32 s{S_EQ}, s{S_T}, 1')
    else: a(f's_mov_b32 s{S_EQ}, 0')
    a(f's_mov_b32 s{S_EX}, s{S_EQ}\ns_mov_b32 s3, s{S_EQ}')
    a(f's_lshl_b32 s{S_M0}, s{S_W}, 12')
    a('v_and_b32 v40, 15, v0\nv_lshrrev_b32 v41, 4, v0\nv_lshrrev_b32 v42, 2, v0\nv_and_b32 v43, 3, v0')
    a(f's_lshl_b32 s{S_T}, s{S_W}, 4')
    a(f'v_add_u32 v44, s{S_T}, v41')
    a('v_lshlrev_b32 v45, 1, v41\nv_xor_b32 v45, v45, v40\nv_lshlrev_b32 v45, 4, v45')
    a('v_xor_b32 v46, 128, v45')
    a(f'v_lshl_add_u32 v{V_DQ}, v44, 13, v45\nv_lshl_add_u32 v{V_DQ+1}, v44, 13, v46')
    a(f'v_add_u32 v{V_DQ+1}, {4*8192-1024}, v{V_DQ+1}')
    a(f'v_add_u32 v{V_DQ+2}, {8*8192-2048}, v{V_DQ}\nv_add_u32 v{V_DQ+3}, {8*8192-2048}, v{V_DQ+1}')
    a(f'v_lshl_add_u32 v{V_DV}, v44, 8, v45\nv_lshl_add_u32 v{V_DV+1}, v44, 8, v46')
    a(f'v_lshlrev_b32 v{V_XN}, 4, v0')
    a(f's_and_b32 s{S_T}, s{S_W}, 1\ns_mul_i32 s{S_T}, s{S_T}, 192\ns_mul_i32 s{S_T+1}, s{S_HEAD}, 96\ns_mov_b32 s{S_T+2}, 10923\ns_movk_i32 s{S_T+3}, 2752')
    for i in range(3):
        a(f'v_add_u32 v45, s{S_T}, v0')
        if i: a(f'v_add_u32 v45, {64*i}, v45')
        a(f'v_mul_u32_u24 v46, s{S_T+2}, v45\nv_lshrrev_b32 v46, 16, v46')
        a('v_mul_u32_u24 v47, 6, v46\nv_sub_u32 v47, v45, v47')
        a(f'v_lshl_add_u32 v47, v47, 4, s{S_T+1}')
        a(f'v_mad_u32_u24 v48, v46, s{S_T+3}, v47')
        if i: a(f'v_subrev_u32 v48, {1024*i}, v48')
        a(f'v_cmp_gt_u32 vcc, s{S_T+3}, v47\nv_mov_b32 v49, 0x40000000\ns_nop 0')
        a(f'v_cndmask_b32 v{V_DG+i}, v49, v48, vcc')
    a(f's_and_b32 s{S_MG}, s{S_W}, 1\ns_mul_i32 s{S_MG}, s{S_MG}, 3072\ns_lshr_b32 s{S_T}, s{S_W}, 1\ns_mul_i32 s{S_T}, s{S_T}, 6144')
    a(f's_add_u32 s{S_MG}, s{S_MG}, s{S_T}\ns_add_u32 s{S_MG}, s{S_MG}, {LDS_V}')
    a(f's_lshl_b32 s{S_T+4}, s{S_QB}, 4\ns_lshl_b32 s{S_T+1}, s{S_W}, 2\ns_add_u32 s{S_T+4}, s{S_T+4}, s{S_T+1}')
    a('s_waitcnt lgkmcnt(0)')
    a(f's_lshl_b32 s{S_T}, s{S_HEAD}, 8')
    a(f's_add_u32 s16, s16, s{S_T}\ns_addc_u32 s17, s17, 0\ns_sub_u32 s18, {512*8192}, s{S_T}\ns_mov_b32 s19, 0x20000')
    a(f's_cmp_ge_u32 s{S_W}, 2\ns_cselect_b32 s20, s22, s20\ns_cselect_b32 s21, s23, s21\ns_mov_b32 s22, {512*2752}\ns_mov_b32 s23, 0x20000')
    a(f's_lshl_b32 s{S_T+1}, s{S_T+4}, 14')
    a(f's_add_u32 s24, s4, s{S_T+1}\ns_addc_u32 s25, s5, 0\ns_mov_b32 s26, 0x10000\ns_mov_b32 s27, 0x20000')

    vm = VM()
    def sub_ops(kind, e):
        ops = []; tag = (kind, e)
        if kind == 'q':
            ops += [('s', f's_add_u32 m0, s{S_M0}, {(e%4)*16384}', None), ('s', f's_lshl_b32 s{S_T}, s{S_EQ}, 19', None)]
            ops += [('m', f'buffer_load_dwordx4 v{V_DQ+i}, {sr(S_WQ)}, s{S_T} offen offset:{1024*i} lds', tag) for i in range(4)]
            ops += [('s', f's_add_u32 s{S_EQ}, s{S_EQ}, 1', None), ('s', f's_and_b32 s{S_EQ}, s{S_EQ}, 7', None)]
        elif kind == 'u':
            ops += [('s', f's_add_u32 m0, s{S_MG}, {(e%4)*16384}', None), ('s', f's_mul_i32 s{S_T}, s3, {64*2752}', None)]
            ops += [('m', f'buffer_load_dwordx4 v{V_DG+i}, {sr(S_GU)}, s{S_T} offen offset:{1024*i} lds', tag) for i in range(3)]
            ops += [('s', 's_add_u32 s3, s3, 1', None), ('s', 's_and_b32 s3, s3, 7', None)]
        elif kind == 'K':
            ops += [('s', f's_add_u32 m0, s{S_M0}, {(e%4)*16384}', None)]
            ops += [('m', dma_k(i), tag) for i in range(4)]
            ops += [('s', f's_add_u32 s{S_KO}, s{S_KO}, 16384', None)]
        elif kind == 'V':
            ops += [('s', f's_add_u32 m0, s{S_M0}, {LDS_V + ((e+1)%4)*16384}', None)]
            ops += [('m', dma_v(i), tag) for i in range(4)]
            ops += [('s', f's_add_u32 s{S_VO}, s{S_VO}, 16384', None)]
        elif kind == 'f':
            ops += [('s', f's_lshl_b32 s{S_T}, s{S_QB}, 2', None), ('s', f's_add_u32 s{S_T}, s{S_T}, s{S_W}', None), ('s', f's_lshl_b32 s{S_T}, s{S_T}, 11', None),
                    ('v', f'v_and_b32 v{V_F}, 15, v0', None), ('v', f'v_lshlrev_b32 v{V_F}, 7, v{V_F}', None),
                    ('m', f'buffer_load_dword v{V_F+1}, v{V_F}, {sr(S_K)}, s{S_T} offen', tag),
                    ('m', f'buffer_load_dword v{V_F+1}, v{V_F}, {sr(S_V)}, s{S_T} offen', tag)]
        elif kind == 'x':
            if e % 2 == 0:
                ops += [('s', f's_lshl_b32 s{S_XO}, s{S_EX}, 11', None)]
                ops += [('s', f's_add_u32 s{S_XO+qt}, s{S_XO}, {16384*qt}', None) for qt in range(1, 4)]
                ops += [('s', f's_add_u32 s{S_EX}, s{S_EX}, 1', None), ('s', f's_and_b32 s{S_EX}, s{S_EX}, 7', None)]
            ops += [('m', f'buffer_load_dwordx4 {xb(e,qt)}, v{V_XN}, {sr(S_XN)}, s{S_XO+qt} offen offset:{1024*(e%2)}', tag) for qt in range(4)]
        return ops
    def emit_ops(ops):
        prev = ''
        for kind, ins, tag in ops:
            if kind == 'm' and 'm0' in prev: a('s_nop 0')
            a(ins); prev = ins
            if kind == 'm': vm.add(tag)
    def xb(ks, qt): return ar(A_XB + 16*(ks % 8) + 4*qt)
    for kind, e in (('q', 0), ('x', 0), ('x', 1), ('u', 0)): emit_ops(sub_ops(kind, e))
    a('v_xor_b32 v45, v40, v41\nv_lshlrev_b32 v45, 4, v45')
    a(f'v_lshl_add_u32 v{V_DK}, v44, 8, v45')
    for i in range(1, 4): a(f'v_xor_b32 v{V_DK+i}, {64*i}, v{V_DK}')
    a(f'v_lshl_add_u32 v22, v40, 8, v45')
    a('v_and_b32 v45, 7, v42\nv_lshlrev_b32 v45, 1, v45')
    a(f'v_xor_b32 v46, v45, v43\nv_lshlrev_b32 v46, 4, v46\nv_lshl_add_u32 v{V_RQ}, v42, 8, v46')
    for i in range(1, 4): a(f'v_xor_b32 v{V_RQ+i}, {64*i}, v{V_RQ}')
    a('v_lshrrev_b32 v46, 1, v43\nv_xor_b32 v46, v45, v46\nv_lshlrev_b32 v46, 4, v46\nv_lshl_add_u32 v46, v42, 8, v46')
    a(f'v_and_b32 v47, 1, v43\nv_lshl_add_u32 v46, v47, 3, v46\nv_add_u32 v{V_RV}, {LDS_V}, v46')
    for i in range(1, 8): a(f'v_xor_b32 v{V_RV+i}, {32*i}, v{V_RV}')
    a(f'v_mul_u32_u24 v46, 96, v42\nv_lshl_add_u32 v46, v43, 3, v46\nv_add_u32 v{V_RG}, {LDS_V}, v46')
    a(f's_lshl_b32 s{S_T+1}, s{S_HEAD}, 19')
    a(f's_add_u32 s12, s10, s{S_T+1}\ns_addc_u32 s13, s11, 0\ns_mov_b32 s14, 0x80000\ns_mov_b32 s15, 0x20000')
    a(f's_add_u32 s8, s8, s{S_T+1}\ns_addc_u32 s9, s9, 0\ns_mov_b32 s10, 0x80000\ns_mov_b32 s11, 0x20000')
    a(f's_lshl_b32 s{S_T+3}, s{S_T+4}, 10\ns_lshl_b32 s{S_T+2}, s{S_T+4}, 9\ns_add_u32 s{S_T+2}, s{S_T+2}, {WS_H}')
    a(f's_add_u32 s28, s4, s{S_T+2}\ns_addc_u32 s29, s5, 0\ns_mov_b32 s30, {85*65536+2048}\ns_mov_b32 s31, 0x20000')
    a(f's_add_u32 s{S_T+1}, s{S_T+1}, s{S_T+3}\ns_add_u32 s{S_T+1}, s{S_T+1}, {WS_O}')
    a(f's_add_u32 s32, s4, s{S_T+1}\ns_addc_u32 s33, s5, 0\ns_mov_b32 s34, {3*131072+4096}\ns_mov_b32 s35, 0x20000')
    a(f's_mov_b32 s{S_KO}, 0\ns_mov_b32 s{S_VO}, 0\ns_mov_b32 s{S_SC}, {QSCALE}\ns_mov_b32 s{S_SC+1}, {QSCALE}')
    st.mark('setup')
    e0 = 8 - defer
    items = [(e, t) for e in range(e0) for t in range(14)]
    items += [(e, t) for e in range(e0, 8) for t in range(8, 14)]
    n_gu_end = len(items)
    items += [(e, t) for e in range(e0, 8) for t in range(8)]
    NI = len(items); LA = 2
    def res(n): e, t = items[n]; return ('q' if t < 8 else 'u', e)
    first = {}; last = {}; xlast = {}; xfirst = {}
    for n in range(NI):
        first.setdefault(res(n), n); last[res(n)] = n
        xfirst.setdefault(items[n][0], n); xlast[items[n][0]] = n
    def wa(n, kk): return A_WA + 8*(n % 4) + 4*kk
    def rd_w(n, kk, jj):
        e, t = items[n]; base = (e % 4) * 16384
        row = 32*kk + 16*jj
        d = ar(wa(n, kk) + 2*jj, 2)
        if t < 8: return f'ds_read_b64_tr_b16 {d}, v{V_RQ+(t>>1)} offset:{base + row*256 + 8*(t&1)}'
        ft, up = (t-8) >> 1, (t-8) & 1
        return f'ds_read_b64_tr_b16 {d}, v{V_RG} offset:{base + row*96 + 32*ft + 6144*up}'
    def acc(t, qt):
        if t < 8: return vr(V_Q + 32*qt + 4*t)
        return vr(V_GU + 32*((t-8) >> 1) + 16*((t-8) & 1) + 4*qt)
    units = []
    for e in range(1, 8):
        units += [(first[('q', e)], ('q', e), ('q', e-4)), (first[('u', e)], ('u', e), ('u', e-4))]
    for ks in range(2, 16): units.append((xfirst[ks // 2] + LA - 1, ('x', ks), ('x', ks-8)))
    units.sort(key=lambda z: z[0])
    units += [(NI, ('K', 0), ('q', 4)), (NI+1, ('V', 0), ('u', 5)), (NI+2, ('K', 1), ('q', 5)), (NI+3, ('V', 1), ('u', 6))]
    freed = set([(kd_, e) for kd_ in 'qux' for e in range(-8, 0)])
    visible = set([('q', 0)])
    hm = []; hst = []
    for ft, dst in ((1, (208, 212)), (0, (216, 220)), (2, (224, 232))):
        G = V_GU + 32*ft; U = G + 16
        hst += [('s', f's_mul_i32 s3, s{S_HEAD}, {3*65536}', None), ('s', f's_add_u32 s3, s3, {ft*65536}', None)]
        if ft == 2: n_hm01 = len(hm)
        for h in range(2):
            R = range(8*h, 8*h + 8)
            hm += [('v', f'v_mul_f32 v{G+r}, 0xbfb8aa3b, v{G+r}', None) for r in R]
            hm += [('v', f'v_exp_f32 v{G+r}, v{G+r}', None) for r in R]
            hm += [('v', f'v_add_f32 v{G+r}, 1.0, v{G+r}', None) for r in R]
            hm += [('v', f'v_rcp_f32 v{G+r}, v{G+r}', None) for r in R]
            hm += [('v', f'v_mul_f32 v{G+r}, v{G+r}, v{U+r}', None) for r in R]
            hm += [('v', f'v_cvt_pk_bf16_f32 v{dst[h]+r}, v{G+8*h+2*r}, v{G+8*h+2*r+1}', None) for r in range(4)]
            hst += [('m', f'buffer_store_dwordx4 {vr(dst[h])}, v{V_XN}, {sr(S_H)}, s3 offen offset:{1024*h}' + ('' if 'h' in exp else ' sc1'), ('h', 0))]
    n_hm2 = len(hm) - n_hm01
    a(f's_waitcnt vmcnt({vm.wait(("q",0))})\ns_barrier')
    st.mark('first')
    for n in range(LA):
        for kk in range(2):
            for jj in range(2): a(rd_w(n, kk, jj))
    a(f's_waitcnt vmcnt({vm.wait(("x",1))}) lgkmcnt(4)')
    pend = []; rk_done = False; rkq = []; carry = 0
    cnt = lambda r_: 3 if r_[0] == 'u' else 4
    for n in range(NI):
        e, t = items[n]
        st.mark(f'i{n}')
        mf = []
        for qi in range(4):
            qt = qi if n % 2 == 0 else 3 - qi
            for ki in range(2):
                kk = ki if qi % 2 == 0 else 1 - ki
                mf.append((qt, kk, ki))
        if not ch2: mf = [(qt, 0, 0) for qt in range(4)] + [(3 - qt, 1, 1) for qt in range(4)]
        s = Sched([mfma(acc(t, qt), ar(wa(n, kk)), xb(2*e + kk, qt), acc(t, qt) if (e > 0 or ki > 0) else '0') for qt, kk, ki in mf])
        m = n + LA; bar = False
        for ee, nl in xlast.items():
            if nl < n: freed |= set([('x', 2*ee), ('x', 2*ee + 1)])
        if m < NI:
            if res(m) not in visible:
                want = [res(m)]
                other = ('u' if res(m)[0] == 'q' else 'q', res(m)[1])
                if other not in visible and vm.count(other) == cnt(other): want.append(other)
                assert vm.count(res(m)) == cnt(res(m)), (n, res(m))
                w = vm.wait(*want)
                s.sc[0] += [f's_waitcnt vmcnt({w})']; s.sc[1] += ['s_barrier']; bar = True
                for r_ in set(vm.q[:len(vm.q) - w]) - set(vm.q[len(vm.q) - w:]):
                    if r_[0] in 'qu' and vm.count(r_) == cnt(r_): visible.add(r_)
            for kk in range(2):
                for jj in range(2): s.put(1 + 3*kk, rd_w(m, kk, jj), 'm')
        if not bar and units and units[0][2] not in freed and units[0][2][0] in 'qu' and last[units[0][2]] <= n and not pend and n + 4 < NI and units[0][0] >= NI:
            s.sc[1] += ['s_barrier']; bar = True
        s.sc[7].append('PLACEHOLDER')
        lo = 0
        if bar:
            lo = 2
            for r_, nl in last.items():
                if nl <= n: freed.add(r_)
        while units and units[0][2] in freed and len(pend) < 12:
            _, r_, _ = units.pop(0); pend += sub_ops(*r_)
        carry = bg_fill(s, pend, vm, lo, 6, every=pev, nextm=carry) - 8
        if vm.count(('q', 7)) == 4 and not rk_done:
            rk_done = True
            rkq += [('v', f'v_xor_b32 v{V_RK+i}, {64*i}, v22', None) for i in range(4)]
        elif rkq: bg_fill(s, rkq, vm, 0, 7)
        elif n >= n_gu_end + 1: bg_fill(s, hm, vm, 0, 7)
        pre = []
        if n + 1 < NI:
            e1 = items[n + 1][0]
            if xfirst[e1] == n + 1:
                assert vm.count(('x', 2*e1)) == 4 and vm.count(('x', 2*e1 + 1)) == 4, (n, e1)
                pre.append(f'vmcnt({vm.wait(("x",2*e1),("x",2*e1+1))})')
            pre.append(f'lgkmcnt({4 if m < NI else 0})')
        else: pre.append(f'vmcnt({vm.wait(("K",0))})')
        s.sc[7] = ['s_waitcnt ' + ' '.join(pre)]
        s.emit(a)
    assert rk_done and not rkq and vm.count(('K', 0)) == 4
    st.mark('gemm')
    a('s_barrier')
    for f in range(8): a(rd_k(f, 0, 0))
    emit_ops(pend)
    for u_ in units: emit_ops(sub_ops(*u_[1]))
    emit_ops(sub_ops('K', 2))
    for i in range(16):
        for r in range(4): a(f'v_pk_mul_f32 {vr(V_Q+8*i+2*r,2)}, {vr(V_Q+8*i+2*r,2)}, {sr(S_SC,2)}')
        for r in range(4): a(f'v_cvt_pk_bf16_f32 v{V_Q+4*i+r}, v{V_Q+8*i+2*r}, v{V_Q+8*i+2*r+1}')
    a('s_waitcnt lgkmcnt(0)')
    st.mark('qcv')
    s = Sched(qk_mfmas(V_S, lambda qt: '0'))
    bg_fill(s, hm, vm, 0, 31)
    s.emit(a)
    for f in range(8): a(rd_k(f, 0, 1))
    while len(hm) > n_hm2: a(hm.pop(0)[1])
    st.mark('qk0')
    a(f's_cmp_lg_u32 s{S_RETRY}, 0\ns_cbranch_scc1 L{k}_maxpass')
    for qt in range(4):
        b = V_S + 8*qt; m = V_T + 2*qt
        a(f'v_max3_f32 v{m}, v{b}, v{b+1}, v{b+2}\nv_max3_f32 v{m+1}, v{b+3}, v{b+4}, v{b+5}\nv_max3_f32 v{m}, v{m}, v{b+6}, v{b+7}\nv_max_f32 v{m}, v{m}, v{m+1}')
    a(f'L{k}_redm:')
    a(f'v_mov_b32 v23, 0x3f803f80')
    for j, op in enumerate(('v_permlane16_swap_b32', 'v_permlane32_swap_b32')):
        for qt in range(4): a(f'v_mov_b32 v{V_T+2*qt+1}, v{V_T+2*qt}')
        a(f'v_accvgpr_write_b32 a{A_ONE+2*j}, v23\nv_accvgpr_write_b32 a{A_ONE+2*j+1}, v23')
        for qt in range(4): a(f'{op} v{V_T+2*qt}, v{V_T+2*qt+1}')
        a('s_nop 1')
        for qt in range(4): a(f'v_max_f32 v{V_T+2*qt}, v{V_T+2*qt}, v{V_T+2*qt+1}')
    for qt in range(4):
        for r in range(4): a(f'v_sub_f32 v{V_NM+4*qt+r}, 0, v{V_T+2*qt}')
    for i in range(0, 32, 2): a(f'v_pk_add_f32 {vr(V_S+i,2)}, {vr(V_S+i,2)}, {vr(V_NM+4*(i//8),2)}')
    for i in range(16): a(f'v_exp_f32 v{V_S+i}, v{V_S+i}')
    a(f's_waitcnt vmcnt({vm.wait(("K",1),("V",0))}) lgkmcnt(0)')
    for i in range(8): a(f'v_cvt_pk_bf16_f32 v{V_P+i}, v{V_S+2*i}, v{V_S+2*i+1}')
    st.mark('loop')
    late = [f's_bfe_u32 s{S_SPL}, s2, 0x20001', f's_and_b32 s{S_T}, s2, 1', f's_bfe_u32 s{S_C}, s2, 0x20003',
            f's_lshl_b32 s{S_T+1}, s{S_QB}, 1', f's_add_u32 s{S_T+1}, s{S_T+1}, s{S_T}',
            f's_lshl_b32 s{S_TILE}, s{S_T+1}, 2', f's_add_u32 s{S_TILE}, s{S_TILE}, s{S_C}',
            f's_lshl_b32 s{S_RT0}, s{S_T+1}, 3', f's_lshl_b32 s{S_T+2}, s{S_W}, 1', f's_add_u32 s{S_RT0}, s{S_RT0}, s{S_T+2}',
            f's_lshl_b32 s{S_PW}, s{S_T}, 1', f's_lshr_b32 s{S_T+2}, s{S_W}, 1', f's_add_u32 s{S_PW}, s{S_PW}, s{S_T+2}',
            f's_lshl_b32 s{S_T}, s{S_TILE}, 2', f's_add_u32 s{S_T}, s{S_T}, s{S_SPL}', f's_lshl_b32 s{S_T}, s{S_T}, 2', f's_add_u32 s{S_T}, s{S_T}, s{S_W}',
            f's_mul_i32 s{S_T}, s{S_T}, 12288', f's_add_u32 s{S_T}, s{S_T}, {WS_PART}',
            f's_add_u32 s{S_IB}, s4, s{S_T}', f's_addc_u32 s{S_IB+1}, s5, 0', f's_movk_i32 s{S_IB+2}, 12288', f's_mov_b32 s{S_IB+3}, 0x20000',
            f's_getpc_b64 s[{S_CD}:{S_CD+1}]\nL{k}_pc:', f's_add_u32 s{S_CD}, s{S_CD}, L{k}_last-L{k}_pc', f's_addc_u32 s{S_CD+1}, s{S_CD+1}, 0',
            f's_mov_b32 s{S_CD+2}, 0', f's_mov_b32 s{S_CD+3}, 0x20000', f's_lshl_b32 s{S_AJ}, s{S_W}, 13', f's_mov_b32 s{S_CNT}, 1']
    late2 = [f's_add_u32 s{S_FL}, s4, {WS_FLAG}', f's_addc_u32 s{S_FL+1}, s5, 0', f's_mov_b32 s{S_FL+2}, {FLAG_BYTES}'] + [f's_brev_b32 s{S_PF+i}, 1' for i in range(3)]
    vq = hm + [('v', f'v_lshlrev_b32 v{V_PF}, 3, v{V_XN}', None), ('v', f'v_mov_b32 v{V_PF+1}, 0', None), ('v', f'v_mov_b32 v{V_F}, 0', None)]
    vq += [('v', f'v_mov_b32 v{r}, 0', None) for r in (OV, OV+1)]
    bg = [('s', x, None) for x in late] + sub_ops('K', 3) + sub_ops('V', 2)
    def mk0(lo, hi, nst):
        def f(s):
            for _ in range(nst):
                if vm.count(('h', 0)) + sum(1 for x in bg if x[2] == ('h', 0)) >= 4: assert len(vq) <= 5, len(vq)
                while hst[0][0] == 's': bg.append(hst.pop(0))
                bg.append(hst.pop(0))
                if not hst: bg.extend([('s', x, None) for x in late2])
            bg_fill(s, bg, vm, lo, hi, 3); bg_fill(s, vq, vm, lo, hi)
        return f
    for u in range(npeel):
        if u % 2 == 1: bg += sub_ops('K', 4 + u // 2)
        st.mark(f'u{u}')
        phase_qk(a, u, barrier=(u % 2 == 0), extra=mk0(1, 30, hsp[2*u]))
        if u % 2 == 1: bg += sub_ops('V', 3 + u // 2)
        endw = (lambda: f's_waitcnt vmcnt({vm.wait(("K",2+u//2),("V",1+u//2))}) lgkmcnt(0)') if u % 2 == 1 else 's_waitcnt lgkmcnt(0)'
        phase_pv(a, u, dma=False, endwait=endw, extra=mk0(0, 34, hsp[2*u+1]), zero=(u == 0))
    assert not hst
    assert not bg and not vq, (bg, vq)
    assert vm.wait(('K', 2 + npeel // 2), ('V', 1 + npeel // 2)) >= 8
    st.mark('peeled')
    a(f's_branch L{k}_u{npeel}')
    a('.p2align 6')
    a(f'L{k}_loop:')
    pf = {0: f'buffer_load_dword v23, v{V_PF}, {sr(S_CD)}, s{S_AJ} offen',
          2: f'buffer_load_dword v23, v{V_PF}, {sr(S_WD)}, s{S_PF} offen',
          4: f'buffer_load_dword v23, v{V_PF+1}, {sr(S_ACT)}, s{S_PF+1} offen',
          6: f'buffer_load_dword v23, v{V_PF}, {sr(S_WO)}, s{S_PF+2} offen'}
    for u in range(8):
        if u == 2: a(f's_cbranch_scc1 L{k}_last')
        if u == npeel: a(f'L{k}_u{npeel}:')
        def exq(s):
            if u in pf and not (u == 0 and 'I' in exp): s.place(pf[u], 'm', pfg)
        phase_qk(a, u, barrier=(u % 2 == 0), extra=exq)
        ex = None
        if u == 1: ex = lambda s: s.scalar(4, f's_add_u32 s{S_CNT}, s{S_CNT}, 1', 8)
        endw = 's_waitcnt vmcnt(16) lgkmcnt(0)' if u % 2 == 1 else 's_waitcnt lgkmcnt(0)'
        phase_pv(a, u, endwait=endw, extra=ex)
        if u == 1: a(f's_cmp_eq_u32 s{S_CNT}, 8')
    a(f's_bitcmp1_b32 {0b1110000}, s{S_CNT}\ns_cbranch_scc0 L{k}_loop')
    a(f's_cmp_eq_u32 s{S_CNT}, 5\ns_cbranch_scc1 L{k}_lb3\ns_cmp_eq_u32 s{S_CNT}, 6\ns_cbranch_scc1 L{k}_lb4')
    st.mark('lb4')
    a(f's_lshl_b32 s{S_T}, s{S_QB}, 2\ns_add_u32 s{S_T}, s{S_T}, s{S_W}\ns_lshl_b32 s{S_T}, s{S_T}, 5\ns_add_u32 s{S_T}, s{S_T}, s{S_HEAD}\ns_lshl_b32 s{S_T}, s{S_T}, 2')
    setflag(a, f's{S_T}', V_F)
    a(f's_branch L{k}_loop')
    a(f'L{k}_lb3:')
    st.mark('lb5')
    a(f's_lshl_b32 s{S_T+1}, s{S_QB}, 2\ns_add_u32 s{S_T+1}, s{S_T+1}, s{S_PW}\ns_lshl_b32 s{S_T+1}, s{S_T+1}, 7')
    a(f'v_and_b32 v{V_F}, 31, v0\nv_lshlrev_b32 v{V_F}, 2, v{V_F}')
    a(f'buffer_load_dword v{V_F+1}, v{V_F}, {sr(S_FL)}, s{S_T+1} offen sc1')
    a(f's_lshl_b32 s{S_T}, s{S_C}, 8')
    a(f's_add_u32 s{S_WD}, s{S_PWD}, s{S_T}\ns_addc_u32 s{S_WD+1}, s{S_PWD+1}, 0\ns_sub_u32 s{S_WD+2}, {1376*1024}, s{S_T}')
    a(f's_add_u32 s{S_WO}, s{S_PWO}, s{S_T}\ns_addc_u32 s{S_WO+1}, s{S_PWO+1}, 0\ns_sub_u32 s{S_WO+2}, {4096*1024}, s{S_T}')
    a(f's_mul_i32 s{S_WOF}, s{S_SPL}, {352*1024}\ns_mul_i32 s{S_AOF}, s{S_SPL}, {11*131072}')
    a(f's_lshl_b32 s{S_T}, s{S_RT0}, 9\ns_sub_u32 s{S_ACT+2}, {H_BYTES}, s{S_T}\ns_add_u32 s{S_T}, s{S_T}, {WS_H}')
    a(f's_add_u32 s{S_ACT}, s4, s{S_T}\ns_addc_u32 s{S_ACT+1}, s5, 0')
    for i in range(2):
        a(f'v_and_b32 v22, 0xff, v{V_DV+i}\nv_sub_u32 v{V_DW+i}, v{V_DV+i}, v22\nv_lshl_add_u32 v{V_DW+i}, v{V_DW+i}, 2, v22')
    a(f'v_add_u32 v{V_DW+1}, 3072, v{V_DW+1}\nv_add_u32 v{V_DW+2}, 6144, v{V_DW}\nv_add_u32 v{V_DW+3}, 6144, v{V_DW+1}')
    a(f's_lshl_b32 s{S_T}, s{S_RT0}, 6\ns_add_u32 s{S_T}, s{S_T}, s{S_C}\ns_lshl_b32 s{S_T}, s{S_T}, 2\ns_add_u32 s{S_T}, s{S_T}, s{S_SPL}\ns_lshl_b32 s{S_T}, s{S_T}, 6')
    a(f'v_and_b32 v22, 15, v0\nv_lshrrev_b32 v{OV}, 4, v0\nv_lshlrev_b32 v22, 10, v22\nv_lshl_add_u32 v22, v{OV}, 3, v22\nv_add_u32 v{OV}, s{S_T}, v22\nv_add_u32 v{OV+1}, 0x4000, v{OV}')
    a(f's_branch L{k}_loop')
    a(f'L{k}_lb4:')
    st.mark('lb6')
    a(f'v_cmp_eq_u32 vcc, 0, v{V_F+1}')
    a(f'v_lshrrev_b32 v{V_PF+1}, 3, v0\nv_min_u32 v{V_PF+1}, 5, v{V_PF+1}\nv_and_b32 v22, 7, v0\nv_lshlrev_b32 v22, 7, v22\nv_lshl_add_u32 v{V_PF+1}, v{V_PF+1}, 16, v22')
    a(f's_cbranch_vccz L{k}_hok')
    poll(a, f'L{k}_ph', f's{S_T+1}')
    a(f'L{k}_hok:')
    a(f's_lshr_b32 s{S_T}, s2, 3\ns_lshl_b32 s{S_T}, s{S_T}, 2\ns_add_u32 s{S_T}, s{S_T}, s{S_W}\ns_lshl_b32 s{S_T}, s{S_T}, 13')
    a(f's_lshl_b32 s{S_T+1}, s{S_C}, 8\ns_sub_u32 s{S_T}, s{S_T}, s{S_T+1}')
    a(f's_lshl_b32 s{S_PF+2}, s{S_SPL}, 20\ns_add_u32 s{S_PF+2}, s{S_PF+2}, s{S_T}')
    a(f's_add_u32 s{S_T+1}, s{S_WOF}, s{S_T}\ns_cmp_lt_u32 s{S_T}, {384*1024-1024}\ns_cselect_b32 s{S_PF}, s{S_T+1}, s{S_PF}')
    if 'I' not in exp: a(f's_mov_b32 s{S_CD+2}, L{k}_end-L{k}_last')
    a(f's_mul_i32 s{S_PF+1}, s{S_C}, {3*131072}\ns_add_u32 s{S_PF+1}, s{S_PF+1}, s{S_AOF}')
    a(f's_branch L{k}_loop')

    a(f'L{k}_last:')
    vm = VM()
    for G in (30, 31, 32):
        for _ in range(8): vm.add(('G', G))
    def w_ops(srd_, pair, slot, half, tag):
        ops = [('s', f's_add_u32 m0, s{S_M0}, {half*LDS_V + slot*16384 if slot < 4 else 2*LDS_V + half*16384}', None)]
        ops += [('m', dma_w(i, srd_), tag) for i in range(4)]
        if tag[0] == 'P' and srot == 2:
            n1 = 2*tag[1] + half + 1
            ops += [('s', f's_add_u32 s{S_WOF}, s{S_WOF}, 65536', None), ('s', f's_and_b32 s{S_WOF}, s{S_WOF}, 0x30000', None),
                    ('s', f's_add_u32 s{S_WOF}, s{S_WOF}, s{S_WJ}', None)]
            if n1 % 4 == 3: ops += [('s', f's_add_u32 s{S_WJ}, s{S_WJ}, 0x40000', None)]
            return ops
        ops += [('s', f's_add_u32 s{S_WOF}, s{S_WOF}, ' + (f's{S_WJ}' if tag == ('P', 3) and half else '65536'), None)]
        return ops
    st.mark('last')
    hl = []; hsw = []
    for ks in range(11):
        for jj in range(2):
            if ks < 6:
                hl += [('m', f'buffer_load_dwordx4 {vr(208 + 8*ks + 4*jj)}, v{V_XN}, {sr(S_ACT)}, s{S_AOF} offen sc1', ('H', ks))]
                hsw += [f'v_swap_b32 v{208 + 8*ks + 2 + jj}, v{208 + 8*ks + 4 + jj}']
            else:
                hl += [('m', f'buffer_load_dwordx2 {ar(148 + 8*(ks-6) + 4*rt + 2*jj, 2)}, v{V_XN}, {sr(S_ACT)}, s{S_AOF} offen offset:{8*rt} sc1', ('H', ks)) for rt in range(2)]
            hl += [('s', f's_add_u32 s{S_AOF}, s{S_AOF}, 65536', None)]
    XV = V_PT
    bg = [('s', f's_mov_b32 s12, s{S_PX}', None), ('s', f's_mov_b32 s13, s{S_PX+1}', None), ('s', f's_mov_b32 s14, {XN_BYTES}', None)] + hl[:20]
    def mk(lo, hi, every): return lambda s: bg_fill(s, bg, vm, lo, hi, every)
    phase_qk(a, 2, True, extra=mk(1, 30, 4))
    phase_pv(a, 2, dma=False, endwait='s_waitcnt lgkmcnt(0)', extra=mk(0, 34, 3))
    bg += w_ops(S_WD, 0, 1, 0, ('W', 0)) + w_ops(S_WD, 0, 1, 1, ('W', 0)) + hl[20:27]
    phase_qk(a, 3, False, extra=mk(1, 30, 4))
    phase_pv(a, 3, dma=False, endwait=lambda: f's_waitcnt vmcnt({vm.wait(("G",31))}) lgkmcnt(0)', extra=mk(0, 34, 3))
    bg += w_ops(S_WD, 1, 2, 0, ('W', 1)) + hl[27:42]
    phase_qk(a, 4, True, extra=mk(1, 30, 4))
    phase_pv(a, 4, dma=False, endwait='s_waitcnt lgkmcnt(0)', extra=mk(0, 34, 3))
    bg += w_ops(S_WD, 1, 2, 1, ('W', 1)) + hl[42:]
    phase_qk(a, 5, False, extra=mk(1, 30, 4))
    phase_pv(a, 5, dma=False, endwait=lambda: f's_waitcnt vmcnt({vm.wait(("G",32))}) lgkmcnt(0)', extra=mk(0, 34, 3))
    PSLOT = [4, 0, 1, 2, 3, 4, 0, 1]
    def wo_pair(P): return w_ops(S_WO, P, PSLOT[P], 0, ('P', P)) + w_ops(S_WO, P, PSLOT[P], 1, ('P', P))
    bg += w_ops(S_WD, 2, 3, 0, ('W', 2)) + w_ops(S_WD, 2, 3, 1, ('W', 2))
    if srot == 2:
        bg += [('s', f's_lshl_b32 s{S_WJ}, s{S_SPL}, 20', None), ('s', f's_lshl_b32 s{S_WOF}, s{S_C}, 16', None), ('s', f's_add_u32 s{S_WOF}, s{S_WOF}, s{S_WJ}', None),
               ('s', f's_lshl_b32 s{S_AJ}, s{S_WJ}, 2', None), ('s', f's_lshl_b32 s{S_AOF}, s{S_WOF}, 2', None)]
    else: bg += [('s', f's_lshr_b32 s{S_T}, s{S_C}, 1' if srot else f's_mov_b32 s{S_T}, 0', None),
           ('s', f's_lshl_b32 s{S_T+1}, s{S_SPL}, 1', None), ('s', f's_add_u32 s{S_T+1}, s{S_T+1}, s{S_T}', None),
           ('s', f's_lshl_b32 s{S_AOF}, s{S_T+1}, 21', None), ('s', f's_lshl_b32 s{S_WOF}, s{S_T+1}, 19', None),
           ('s', f's_lshl_b32 s{S_AJ}, s{S_T}, 22', None), ('s', f's_sub_u32 s{S_AJ}, 131072, s{S_AJ}', None),
           ('s', f's_lshl_b32 s{S_WJ}, s{S_T}, 20', None), ('s', f's_sub_u32 s{S_WJ}, 65536, s{S_WJ}', None)]
    bg += wo_pair(0)
    phase_qk(a, 6, True, extra=mk(1, 30, 4))
    phase_pv(a, 6, kreads=False, dma=False, extra=mk(0, 35, 3))
    u = 7
    for dt in range(8):
        for jj in range(2): a(rd_v(dt, jj, u // 2, u % 2))
    sb = V_S + 32*(u % 2); pb = V_P + 16*(u % 2)
    for i in range(16, 22): a(f'v_exp_f32 v{sb+i}, v{sb+i}')
    a(f's_waitcnt vmcnt({vm.wait(("H",5))}) lgkmcnt(0)')
    def ex7(s):
        for j, i in enumerate(range(22, 32)): s.put(j, f'v_exp_f32 v{sb+i}, v{sb+i}', 'v', 2)
        for j, i in enumerate(range(8, 16)): s.put(10 + j // 2, f'v_cvt_pk_bf16_f32 v{pb+i}, v{sb+2*i}, v{sb+2*i+1}', 'v')
        bg_fill(s, bg, vm, 14, 35, 3)
        for x in hsw: s.place(x, 'v', 14)
    phase_pv(a, u, kreads=False, dma=False, soft=False, extra=ex7)
    assert not bg, bg
    st.mark('att')
    T = V_NM
    a(f's_lshl_b32 s{S_T+1}, s{S_W}, 2\ns_add_u32 s{S_T+1}, s{S_T+1}, {LDS_FLAG}\ns_lshl_b32 s{S_T+2}, s{S_SPL}, 6\ns_nop 0')
    for c2 in range(2):
        for rt in range(2):
            a(f'buffer_load_dwordx2 {vr(XV+4*c2+2*rt,2)}, v{OV+rt}, s[12:15], 0 offen offset:{32*c2}'); vm.add(('X', 0))
    for qt in range(4): a(f'v_accvgpr_read_b32 v{T+2*qt}, a{A_L+4*qt}')
    a(f'v_max3_f32 v{T+8}, v{T}, v{T+2}, v{T+4}\nv_max_f32 v{T+8}, v{T+8}, v{T+6}')
    a(f'v_mov_b32 v{T+9}, 0x5f800000')
    a(f'v_cmp_nlt_f32 vcc, v{T+8}, v{T+9}')
    for qt in range(4): a(f'v_rcp_f32 v{T+2*qt}, v{T+2*qt}')
    a(f's_cmp_lg_u64 vcc, 0\ns_cselect_b32 s{S_T}, 1, 0')
    a(f'v_mov_b32 v{T+9}, s{S_T}\nv_mov_b32 v{T+10}, s{S_T+1}\nds_write_b32 v{T+10}, v{T+9}')
    a(f'v_mov_b32 v{T+10}, {LDS_FLAG}')
    for qt in range(4):
        for e in range(4):
            a(f's_mov_b32 s{S_T}, {131072*e}')
            t = V_S + 16*e
            for r in range(8): a(f'v_accvgpr_read_b32 v{t+r}, a{A_O + 16*(2*e + r//4) + 4*qt + r%4}')
            for r in range(4): a(f'v_pk_mul_f32 {vr(t+2*r,2)}, {vr(t+2*r,2)}, {vr(T+2*qt,2)} op_sel_hi:[1,0]')
            for r in range(4): a(f'v_cvt_pk_bf16_f32 v{t+8+r}, v{t+2*r}, v{t+2*r+1}')
            a(f'buffer_store_dwordx4 {vr(t+8)}, v{V_XN}, {sr(S_O)}, s{S_T} offen offset:{1024*qt} sc1'); vm.add(('O', 0))
    for i in range(8): a(f'v_xor_b32 v{V_RV+i}, s{S_T+2}, v{V_RV+i}')
    for i in range(8): a(f'v_subrev_u32 v{V_RWK+i}, {LDS_V}, v{V_RV+i}')
    RWE = [1, 2, 3, 4, 5, 6, 10, 11]
    for i in range(8): a(f'v_add_u32 v{RWE[i]}, {LDS_V}, v{V_RV+i}')
    a(f's_waitcnt vmcnt(16) lgkmcnt(0)\ns_barrier')
    a(f'ds_read_b128 {vr(T+12)}, v{T+10}')
    st.mark('e1')
    def oact(ks, rt): return ar(A_OA + 8*(ks % 16) + 4*rt)
    items = [('b', ks, ct) for ks in range(11) for ct in range(8)]
    items += [('s', ks, ct) for ks in range(32) for ct in range(8) if ks < 32 - dfr or ct >= 2]
    n_send = len(items)
    items += [('s', ks, ct) for ks in range(32 - dfr, 32) for ct in range(2)]
    NI = len(items); LA = 8
    def rd_p(i, jj):
        ph, ks, ct = items[i]
        slot = 1 + ks // 4 if ph == 'b' else PSLOT[ks // 4]
        half, kk = (ks // 2) % 2, ks % 2
        if slot < 4: adr, off = (V_RV if half else V_RWK) + ct, slot*16384
        else: adr, off = RWE[ct], half*16384
        return f'ds_read_b64_tr_b16 {ar(A_W + 4*(i % 16) + 2*jj, 2)}, v{adr} offset:{off + kk*8192 + jj*4096}'
    for i in range(LA):
        for jj in range(2): a(rd_p(i, jj))
    a('s_waitcnt lgkmcnt(12)')
    a(f'v_or_b32 v{T+12}, v{T+12}, v{T+13}\nv_or3_b32 v{T+12}, v{T+12}, v{T+14}, v{T+15}\ns_nop 0')
    a(f'v_readfirstlane_b32 s{S_T}, v{T+12}\ns_andn2_b32 s{S_T}, s{S_T}, s{S_RETRY}\ns_cbranch_scc1 L{k}_retry')
    PT = V_PT + 12; RB = 208; PS = V_AB + 16; XU = V_AB + 48
    bg = []
    bg += [('s', f's_lshl_b32 s{S_T}, s{S_RT0}, 10', None), ('s', f's_add_u32 s{S_T+1}, s{S_T}, {WS_O}', None),
           ('s', f's_add_u32 s{S_ACT}, s4, s{S_T+1}', None), ('s', f's_addc_u32 s{S_ACT+1}, s5, 0', None), ('s', f's_sub_u32 s{S_ACT+2}, {O_BYTES}, s{S_T}', None),
           ('s', f's_lshl_b32 s{S_T}, s{S_TILE}, 4', None), ('s', f's_add_u32 s{S_T}, s{S_T}, s{S_W}', None), ('s', f's_mul_i32 s{S_T}, s{S_T}, 12288', None), ('s', f's_add_u32 s{S_T}, s{S_T}, {WS_PART}', None),
           ('s', f's_add_u32 s8, s4, s{S_T}', None), ('s', f's_addc_u32 s9, s5, 0', None), ('s', f's_mov_b32 s10, {13*12288}', None)]
    for dst, wv in ((S_T+3, S_W), (S_T+4, S_PW)):
        bg += [('s', f's_lshl_b32 s{dst}, s{S_QB}, 2', None), ('s', f's_add_u32 s{dst}, s{dst}, s{wv}', None), ('s', f's_lshl_b32 s{dst}, s{dst}, 2', None),
               ('s', f's_add_u32 s{dst}, s{dst}, s{S_SPL}', None), ('s', f's_lshl_b32 s{dst}, s{dst}, 7', None), ('s', f's_add_u32 s{dst}, s{dst}, {FL_O}', None)]
    bg += [('s', f's_and_b32 s{S_T}, s{S_HEAD}, 7', None), ('s', f's_lshl_b32 s{S_T}, s{S_T}, 2', None), ('s', f's_add_u32 s{S_T+3}, s{S_T+3}, s{S_T}', None)]
    asc = '' if ('n' in exp or 'i' in exp) else ' sc1'
    def o_ops(ks):
        if srot == 2:
            ops = [('m', f'buffer_load_dwordx4 {oact(ks,rt)}, v{V_XN}, {sr(S_ACT)}, s{S_AOF} offen offset:{1024*rt}{asc}', ('A', ks)) for rt in range(2)]
            ops += [('s', f's_add_u32 s{S_AOF}, s{S_AOF}, 131072', None)]
            if ks % 2 == 1:
                ops += [('s', f's_and_b32 s{S_AOF}, s{S_AOF}, 0xc0000', None), ('s', f's_add_u32 s{S_AOF}, s{S_AOF}, s{S_AJ}', None)]
                if ks % 8 == 5: ops += [('s', f's_add_u32 s{S_AJ}, s{S_AJ}, 0x100000', None)]
            return ops
        return [('m', f'buffer_load_dwordx4 {oact(ks,rt)}, v{V_XN}, {sr(S_ACT)}, s{S_AOF} offen offset:{1024*rt}{asc}', ('A', ks)) for rt in range(2)] + \
               [('s', f's_add_u32 s{S_AOF}, s{S_AOF}, ' + (f's{S_AJ}' if ks == 15 else '131072'), None)]
    def cvt_ops(accb, PT):
        return [('v', f'v_cvt_pk_bf16_f32 v{PT+8*(p-1)+r}, v{accb+16*p+2*r}, v{accb+16*p+2*r+1}', None) for p in range(1, 4) for r in range(8)]
    def send_ops(op, PT):
        ops = []
        for p in range(1, 4):
            ops += [('s', f's_xor_b32 s{S_T}, s{S_SPL}, {p}', None), ('s', f's_mul_i32 s{S_T}, s{S_T}, {4*12288}', None), ('s', f's_add_u32 s{S_T}, s{S_T}, {(p-1)*4096}', None)]
            ops += [('m', f'buffer_store_dwordx4 {vr(PT+8*(p-1)+4*h)}, v{V_XN}, s[8:11], s{S_T} offen offset:{2048*op+1024*h} sc1', ('S', op)) for h in range(2)]
        return ops
    def recv_ops(op):
        ops = []
        for p in range(3):
            ops += [('s', f's_movk_i32 s{S_T+1}, {4096*p}', None)]
            ops += [('m', f'buffer_load_dwordx4 {vr(RB+24*op+8*p+4*h)}, v{V_XN}, {sr(S_IB)}, s{S_T+1} offen offset:{2048*op+1024*h} sc1', ('R', op)) for h in range(2)]
        return ops
    def flush(ops):
        prev = ''
        for kind, ins, tag in ops:
            if kind == 'm' and 'm0' in prev: a('s_nop 0')
            a(ins); prev = ins
            if kind == 'm': vm.add(tag)
    first = {}; lastr = {}
    def res(i): ph, ks, _ = items[i]; return ('W' if ph == 'b' else 'P', ks // 4)
    for i in range(NI): first.setdefault(res(i), i); lastr[res(i)] = i
    start = {}
    for i in range(NI): start.setdefault(items[i][:2], i)
    occupant = {1: None, 2: ('W', 0), 3: ('W', 1), 4: ('W', 2), 5: ('P', 0), 6: ('P', 1), 7: ('P', 2)}
    visible = set([('W', 0), ('W', 1), ('W', 2), ('P', 0)]); nextP = 1
    def dl(q):
        for kind, ins, tag in q:
            if kind == 'm':
                if tag[0] == 'A': return start[('s', tag[1])] - amin
                if tag[0] == 'P': return first[tag] - LA - wmin
                return -1
        return 9999
    bsent = False
    qa = []; qw = []; qv = []; qx = []; nxa = 0; acts_ok = False; gap = 0; nextm = 0; seen = set(); m0gap = -9
    for i in range(NI):
        ph, ks, ct = items[i]
        pre = []; bar = False
        if (ph, ks) == ('b', oflag) and ct == 0:
            assert not bg
            a(f's_waitcnt vmcnt({vm.wait(("O",0))})')
            setflag(a, f's{S_T+3}', V_F); vm.add(('F', 0)); bar = True
            qv += [('v', f'v_and_b32 v{V_F}, 7, v0', None), ('v', f'v_lshlrev_b32 v{V_F}, 2, v{V_F}', None)]
        if (ph, ks) == ('b', pk) and ct == 0:
            assert not qv
            qa.append(('m', f'buffer_load_dword v{V_F+1}, v{V_F}, {sr(S_FL)}, s{S_T+4} offen sc1', ('poll', 1)))
        if i == start[('b', pk)] + pkd:
            st.mark('prepoll')
            a(f's_waitcnt vmcnt({vm.wait(("poll",1))})\nv_cmp_eq_u32 vcc, 0, v{V_F+1}\ns_nop 1\ns_cbranch_vccz L{k}_ook')
            poll(a, f'L{k}_po', f's{S_T+4}', slp2)
            a(f'L{k}_ook:')
            st.mark('ook')
            acts_ok = True
            if 'i' in exp: a('buffer_inv sc1'); vm.add(('inv', 0))
            for _ in range(NB): flush(o_ops(nxa)); nxa += 1
        if i == start[('s', 0)] + 4: qv += cvt_ops(V_AB, PT)
        if i == start[('s', 4)]:
            assert not qv
            qv += [('v', ins, None) for j in range(8) for ins in (f'v_lshlrev_b32 v{XU+2*j}, 16, v{XV+j}', f'v_and_b32 v{XU+2*j+1}, 0xffff0000, v{XV+j}')]
        if not bsent and i >= n_send - bearly and vm.count(('A', 31)) == 2 and not qw and nextP > 7 and i < n_send:
            bsent = True; qx += send_ops(1, PT)
        if i == n_send:
            assert not (qa or qw or qv or bg)
            st.mark('send')
            flush(qx); qx = []
            if not bsent: flush(send_ops(1, PT))
            a(f's_mov_b32 s12, s{S_POUT}\ns_mov_b32 s13, s{S_POUT+1}\ns_mov_b32 s{S_AJ}, 0xbfb8aa3b\ns_mov_b32 s{S_AJ+1}, 0xbfb8aa3b')
            cv = cvt_ops(V_AS, PS); so = send_ops(0, PS)
            for p in range(3): flush(cv[8*p:8*p+8] + so[5*p:5*p+5])
            st.mark('sent')
        if i == n_send + 1:
            qx += [('s', f's_lshl_b32 s{S_T+3}, s{S_TILE}, 2', None), ('s', f's_add_u32 s{S_T+3}, s{S_T+3}, s{S_W}', None), ('s', f's_lshl_b32 s{S_T+3}, s{S_T+3}, 7', None),
                   ('s', f's_add_u32 s{S_T+3}, s{S_T+3}, {FL_P}', None), ('s', f's_lshl_b32 s{S_T+2}, s{S_SPL}, 2', None), ('s', f's_add_u32 s{S_T+2}, s{S_T+2}, s{S_T+3}', None)]
        if i == NI - rsd:
            assert not qx
            a('s_waitcnt vmcnt(0)')
            setflag(a, f's{S_T+2}', V_F)
            qv += [('v', f'v_and_b32 v{V_F}, 3, v0', None), ('v', f'v_max_u32 v{V_F}, 1, v{V_F}', None), ('v', f'v_xor_b32 v{V_F}, s{S_SPL}, v{V_F}', None), ('v', f'v_lshlrev_b32 v{V_F}, 2, v{V_F}', None)]
        m = i + LA
        if m < NI and res(m) not in visible:
            assert vm.count(res(m)) == 8, (i, res(m))
            pre.append(f's_waitcnt vmcnt({vm.wait(res(m))})'); bar = True
            w = vm.wait(res(m))
            for r_ in set(vm.q[:len(vm.q) - w]) - set(vm.q[len(vm.q) - w:]):
                if r_[0] == 'P' and vm.count(r_) == 8: visible.add(r_)
        if nextP <= 7 and nextP > 1 and not qw and lastr[occupant[nextP]] < i and i > start[('b', oflag)]: bar = True
        if bar:
            pre.append('s_barrier')
            while nextP <= 7 and (occupant[nextP] is None or lastr[occupant[nextP]] < i):
                qw += wo_pair(nextP); nextP += 1
        if ph == 's' and ks not in seen:
            seen.add(ks)
            assert vm.count(('A', ks)) == 2, ks
            a(f's_waitcnt vmcnt({vm.wait(("A",ks))})')
            st.mark(f's{ks}')
        cur = ks if ph == 's' else -1
        if acts_ok and i < n_send:
            while nxa < 32 and nxa <= cur + alead: qa += o_ops(nxa); nxa += 1
        act = (lambda rt: hfrag(ks, rt)) if ph == 'b' else (lambda rt: oact(ks, rt))
        accb = V_AB if ph == 'b' else V_AS
        for ri in range(2):
            rt = ri if i % 2 == 0 else 1 - ri
            d = vr(accb + 8*ct + 4*rt)
            a(mfma(d, ar(A_W + 4*(i % 16)), act(rt), '0' if ks == 0 else d))
            sc = pre if ri == 0 else []
            if ri == 1 and i % 2 == 1 and i + 1 < NI:
                younger = sum(2 for j in range(i + 3, min(i + LA, NI))) + (1 if i + LA < NI else 0)
                sc = [f's_waitcnt lgkmcnt({younger})']
            if not sc:
                for q in (bg, qx, qa, qw):
                    if q and q[0][0] == 's':
                        sc = [q.pop(0)[1]]
                        if 'm0' in sc[0]: m0gap = gap
                        break
            for x in sc: a(x)
            load = 0
            if m < NI: a(rd_p(m, ri)); load = 1
            if gap >= nextm:
                for q in ((qx, qa, qw) if dl(qa) <= dl(qw) else (qx, qw, qa)):
                    if q and q[0][0] == 'm' and not (q is qw and m0gap == gap and load == 0):
                        _, ins, tag = q.pop(0); a(ins); vm.add(tag); load += 1; nextm = gap + sev; break
            for q in (bg, qv):
                while load < 2 and q and q[0][0] == 'v': a(q.pop(0)[1]); load += 1
            gap += 1
    flush(qx)
    st.mark('dfr')
    U0 = V_AS + 16; U1 = V_AS + 32; U2 = V_AS + 48
    def gather(op, accb):
        R0 = RB + 24*op
        for p in range(3):
            a(f's_waitcnt vmcnt({6*op + 2*(2-p)})')
            for r in range(8): a(f'v_lshlrev_b32 v{U0+2*r}, 16, v{R0+8*p+r}\nv_and_b32 v{U0+2*r+1}, 0xffff0000, v{R0+8*p+r}')
            for r in range(8): a(f'v_pk_add_f32 {vr(accb+2*r,2)}, {vr(accb+2*r,2)}, {vr(U0+2*r,2)}')
    flush(qv)
    poll(a, f'L{k}_pp', f's{S_T+3}', slp)
    st.mark('pp')
    flush(recv_ops(1) + recv_ops(0))
    gather(1, V_AB)
    B_ = V_AB; U2 = XU
    for i in range(8): a(f'v_pk_mul_f32 {vr(U1+2*i,2)}, {vr(B_+2*i,2)}, {sr(S_AJ,2)}')
    for i in range(16): a(f'v_exp_f32 v{U1+i}, v{U1+i}')
    for i in range(8): a(f'v_pk_add_f32 {vr(U1+2*i,2)}, {vr(U1+2*i,2)}, 1.0 op_sel_hi:[1,0]')
    for i in range(16): a(f'v_rcp_f32 v{U1+i}, v{U1+i}')
    a('s_nop 0')
    for i in range(8): a(f'v_pk_mul_f32 {vr(U1+2*i,2)}, {vr(U1+2*i,2)}, {vr(B_+2*i,2)}')
    gather(0, V_AS)
    for i in range(8): a(f'v_pk_fma_f32 {vr(U1+2*i,2)}, {vr(U1+2*i,2)}, {vr(V_AS+2*i,2)}, {vr(U2+2*i,2)}')
    for i in range(8): a(f'v_cvt_pk_bf16_f32 v{U0+i}, v{U1+2*i}, v{U1+2*i+1}')
    for c2 in range(2):
        for rt in range(2):
            a(f'buffer_store_dwordx2 {vr(U0+4*c2+2*rt,2)}, v{OV+rt}, s[12:15], 0 offen offset:{32*c2}')
    if dbg: a('s_waitcnt vmcnt(0)')
    st.mark('end'); st.flush(S_W, V_PT)
    a(f'L{k}_end:\ns_endpgm')
    a(f'L{k}_retry:')
    a(f's_mov_b32 s{S_RETRY}, 1\ns_lshl_b32 s{S_T}, s{S_W}, 6\nv_add_u32 v0, s{S_T}, v0')
    a(f's_waitcnt vmcnt(0) lgkmcnt(0)\ns_barrier\ns_branch L{k}_start')
    a(f'L{k}_maxpass:')
    a(f's_waitcnt vmcnt(0) lgkmcnt(0)\ns_mov_b32 s{S_KO}, 0\ns_mov_b32 m0, s{S_M0}')
    for qt in range(4): a(f'v_mov_b32 v{V_T+2*qt}, 0xff800000')
    a(f'L{k}_mloop:')
    a('s_barrier')
    for i in range(4): a(dma_k(i))
    a('s_waitcnt vmcnt(0)\ns_barrier')
    for un in (1, 0):
        for f in range(8): a(rd_k(f, 0, un))
        a('s_waitcnt lgkmcnt(0)')
        for m in qk_mfmas(V_S, lambda qt: '0'): a(m)
        a('s_nop 7')
        for qt in range(4):
            b = V_S + 8*qt; m = V_T + 2*qt
            for r in range(0, 8, 2): a(f'v_max3_f32 v{m}, v{m}, v{b+r}, v{b+r+1}')
    a(f's_cmp_eq_u32 s{S_RETRY}, 33\ns_cbranch_scc1 L{k}_mdone')
    a(f's_add_u32 s{S_RETRY}, s{S_RETRY}, 1\ns_sub_u32 s{S_KO}, s{S_KO}, 16384\ns_and_b32 s{S_KO}, s{S_KO}, 0x7ffff\ns_branch L{k}_mloop')
    a(f'L{k}_mdone:')
    a(f's_mov_b32 s{S_RETRY}, 1\ns_mov_b32 s{S_KO}, {3*16384}')
    for f in range(8): a(rd_k(f, 0, 1))
    a(f's_branch L{k}_redm')
    a(f'L{k}_codeend:')
    return a.text() + kd(k, 512, 256, 102), (k, 256, 256, LDS_BYTES)
```

```python
from gen import *
import sys
L=dict(marks='start,xin,lnb,tag,pub,xok,i14,i28,i42,i70,loop'.split(','))
V={'a':({},dict(L)),'p3':({},dict(L,p1=3,ng0=3,nx0=4)),'q10':({},dict(L,quiet=10)),'p3q':({},dict(L,p1=3,ng0=3,nx0=4,quiet=12)),'p3x6':({},dict(L,p1=3,ng0=3,nx0=6,quiet=16)),'p8':({},dict(L,p1=8,ng0=1,nx0=2))}
dbg = len(sys.argv)>1
pf = 'v_dbg_' if dbg else 'v_'
ok=[]
for n,(a,b) in V.items():
    try: build(f'{pf}{n}.s',dbg,a,b); ok.append(n)
    except AssertionError as e: print('FAILED',n,repr(e)[:300])
print(','.join(f'{pf}{n}.s' for n in ok)); print(', '.join(f'"dev/{pf}{n}.s"' for n in ok))
```

```python
NAME = 'recurrent_scan__gqa_block_cached__glu_gated_glu__prompt'

class Asm:
    def __init__(self):
        self.L = []
    def __call__(self, s):
        for ln in s.split('\n'):
            ln = ln.strip()
            if ln:
                self.L.append(ln if ln.endswith(':') else '    ' + ln)
    def c(self, s):
        self.L.append('    ; ' + s)
    def text(self):
        return '\n'.join(self.L) + '\n'

def vr(b, n=4): return f'v[{b}:{b+n-1}]' if n > 1 else f'v{b}'
def ar(b, n=4): return f'a[{b}:{b+n-1}]' if n > 1 else f'a{b}'
def sr(b, n=4): return f's[{b}:{b+n-1}]' if n > 1 else f's{b}'

def kstart(a, k):
    a.L.append(f'.globl {k}')
    a.L.append('.p2align 8')
    a.L.append(f'.type {k},@function')
    a.L.append(f'{k}:')

def kd(k, vg, acc, sg=102):
    return f'''.section .rodata,"a"
.p2align 6
.amdhsa_kernel {k}
  .amdhsa_next_free_vgpr {vg}
  .amdhsa_next_free_sgpr {sg}
  .amdhsa_accum_offset {acc}
  .amdhsa_group_segment_fixed_size 0
  .amdhsa_kernarg_size 96
  .amdhsa_user_sgpr_count 2
  .amdhsa_user_sgpr_kernarg_segment_ptr 1
  .amdhsa_system_sgpr_workgroup_id_x 1
.end_amdhsa_kernel
.text
'''

def srd(a, d, base, nrec, add=None):
    if add is None:
        a(f's_mov_b32 s{d}, s{base}\ns_mov_b32 s{d+1}, s{base+1}')
    else:
        a(f's_add_u32 s{d}, s{base}, {add}\ns_addc_u32 s{d+1}, s{base+1}, 0')
    a(f's_mov_b32 s{d+2}, {nrec}\ns_mov_b32 s{d+3}, 0x20000')

WS_XN = 0
WS_H = 2 << 20
WS_O = 8 << 20
WS_DBG = 48 << 20
WS_FLAG = 24 << 20
FL_H = 0
FL_O = 8192
FL_P = 8192 + 16384
FL_X = 8192 + 16384 + 32768
FLAG_BYTES = 8192 + 16384 + 32768 + 32768
WS_PART = 25 << 20
PART_BYTES = 64 * 4 * 3 * 16384
XN_BYTES = 2048 * 512 * 2
H_BYTES = 128 * 43 * 1024
O_BYTES = 128 * 128 * 1024

class Stamps:
    def __init__(self, a, on, kidx, n=12):
        self.a = a; self.on = on; self.kidx = kidx; self.n = 0
    def mark(self):
        if not self.on: return
        i = self.n; self.n += 1
        assert i < 11
        self.a(f's_memrealtime s[96:97]\ns_memtime s[98:99]\ns_waitcnt lgkmcnt(0)\ns_mov_b32 s{64+2*i}, s96\ns_mov_b32 s{65+2*i}, s98')
    def flush(self, swave, vt):
        if not self.on: return
        a = self.a
        a('s_load_dwordx2 s[96:97], s[0:1], 88\ns_waitcnt lgkmcnt(0)')
        a(f's_add_u32 s96, s96, {WS_DBG + self.kidx*0x40000}\ns_addc_u32 s97, s97, 0\ns_mov_b32 s98, 0x40000\ns_mov_b32 s99, 0x20000')
        a(f's_lshl_b32 s100, s2, 10\ns_lshl_b32 s101, s{swave}, 7\ns_add_u32 s100, s100, s101')
        a(f'v_mov_b32 v{vt+1}, 0')
        for i in range(2*self.n):
            a(f'v_mov_b32 v{vt}, s{64+i}\nbuffer_store_dword v{vt}, v{vt+1}, s[96:99], s100 offen offset:{4*i}\ns_waitcnt vmcnt(0)')
```

```python
import sys
from asmlib import *
HDR = open('cdna_kernels/' + NAME + '.s.ref').read().split('; Override launch geometry')[0]
def assemble(parts, path):
    s = HDR
    for _, (k, grid, block, lds) in parts:
        s += f'; @launch kernel={k} grid=({grid},1,1) block=({block},1,1) lds={lds}\n'
    s += '.amdgcn_target "amdgcn-amd-amdhsa--gfx950"\n.text\n'
    for t, _ in parts: s += t
    open(path, 'w').write(s)
def build(path, dbg, k1o={}, k2o={}):
    from k2 import gen_k2
    t, (k, grid, block, lds) = gen_k2(dbg=dbg, **k2o)
    s = HDR + f'; @launch grid=({grid},1,1) block=({block},1,1) lds={lds}\n' + '.amdgcn_target "amdgcn-amd-amdhsa--gfx950"\n.text\n' + t.replace('L' + k, 'L')
    open(path, 'w').write(s)
if __name__ == '__main__':
    build('full_dbg.s', True); build('full.s', False)
```

```python
from asmlib import *
import struct
def f2u(x): return struct.unpack('<I', struct.pack('<f', x))[0]
QSCALE = f2u(1.4426950408889634 / (128 ** 0.5))

V_DK = 1
V_DV = 5
V_F = 7
V_XN = 9
V_DQ = 10
V_RK = 10
V_DG = 14
V_RQ = 17
V_RG = 21
V_DW = 14
V_RWK = 160
V_RV = 24
V_Q = 32
V_S = 96
V_GU = 160
V_P = 160
V_NM = 192
V_T = 176
V_AB = 32
V_AS = 96
V_PT = 168
A_O = 0
A_L = 128
A_ONE = 144
A_K = 192
A_V = 224
A_WA = 96
A_XB = 128
A_OA = 0
A_W = 192
def hfrag(ks, rt):
    return vr(208 + 8*ks + 4*rt) if ks < 6 else ar(148 + 8*(ks-6) + 4*rt)
S_K = 8; S_V = 12; S_WQ = 16; S_GU = 20; S_XN = 24; S_H = 28; S_O = 32
S_WD = 16; S_WO = 20; S_ACT = 24; S_FL = 28
S_W = 36; S_HEAD = 37; S_QB = 38
S_M0 = 39
S_MG = 40
S_XO = 41
S_KO = 45; S_VO = 46
S_CNT = 47; S_RETRY = 48; S_T = 49
S_EQ = 54; S_EX = 55
S_SPL = 40; S_RT0 = 41; S_C = 42; S_WOF = 43; S_AOF = 44; S_TILE = 54; S_PW = 55
S_PX = 56; S_PWO = 58; S_PWD = 60; S_POUT = 62
S_SC = 6
S_IB = 92
S_CD = 88
S_NC = 86; S_NX = 87
V_E = 22
S_CO = 3
S_AJ = 6; S_WJ = 7
V_ONES = 252
S_PF = 51
V_PF = 20
OV = 18
LDS_V = 65536
LDS_FLAG = 0
LDS_BYTES = 163840
V_RWE = 1
SPIN = 1 << 15

OPT = dict(qk='C')
def mfma(d, a_, b_, c): return f'v_mfma_f32_16x16x32_bf16 {d}, {a_}, {b_}, {c}'

class NoSt:
    def mark(self): pass

class Sched:
    def __init__(self, mf):
        self.mf = mf; n = len(mf)
        self.sc = [[] for _ in range(n)]; self.mem = [[] for _ in range(n)]; self.va = [[] for _ in range(n)]
        self.load = [0] * n; self.tags = []
    def put(self, g, ins, kind, cost=1):
        (self.mem if kind == 'm' else self.va)[g].append(ins); self.load[g] += cost
    def place(self, ins, kind, lo, hi=None, cost=1):
        n = len(self.mf); hi = n - 1 if hi is None else min(hi, n - 1)
        for g in range(lo, hi + 1):
            if self.load[g] + cost <= 2:
                self.put(g, ins, kind, cost); return g
        g = min(range(lo, hi + 1), key=lambda x: self.load[x])
        self.put(g, ins, kind, cost); return g
    def scalar(self, g, ins, hi=None):
        n = len(self.mf); hi = g if hi is None else min(hi, n - 1)
        for x in range(g, hi + 1):
            if not self.sc[x]:
                self.sc[x].append(ins); return x
        self.sc[g].append(ins); return g
    def emit(self, a):
        for g, m in enumerate(self.mf):
            a(m)
            for x in self.sc[g] + self.mem[g] + self.va[g]: a(x)

def cost(ins): return 2 if ins.startswith(('v_exp', 'v_rcp')) else 1

class VM:
    def __init__(self): self.q = []
    def add(self, tag): self.q.append(tag)
    def wait(self, *tags):
        idx = max(i for i, t in enumerate(self.q) if t in tags)
        n = len(self.q) - 1 - idx
        assert n <= 63
        return n
    def count(self, tag): return sum(1 for t in self.q if t == tag)

def dma_k(i): return f'buffer_load_dwordx4 v{V_DK+i}, {sr(S_K)}, s{S_KO} offen offset:{1024*i} lds'
def dma_v(i): return f'buffer_load_dwordx4 v{V_DV+(i&1)}, {sr(S_V)}, s{S_VO} offen offset:{1024*i} lds'
def dma_w(i, srd_): return f'buffer_load_dwordx4 v{V_DW+i}, {sr(srd_)}, s{S_WOF} offen offset:{1024*i} lds'
def rd_k(f, t, un):
    ds, kvb = f >> 1, f & 1
    return f'ds_read_b128 {ar(A_K+4*f)}, v{V_RK+ds} offset:{(t%4)*16384 + un*8192 + kvb*4096}'
def rd_v(dt, jj, t, un):
    return f'ds_read_b64_tr_b16 {ar(A_V+4*dt+2*jj,2)}, v{V_RV+dt} offset:{((t+1)%4)*16384 + un*8192 + jj*4096}'

def qk_mfmas(sb, first_c):
    mf = []
    for n in range(32):
        if OPT['qk'] == 'Q':
            qt = n // 8; ds = (n % 8) // 2; kvb = n % 2 if ds % 2 == 0 else 1 - n % 2; head = ds == 0
        else:
            qt = n // 8; ds = n % 4 if (n // 4) % 2 == 0 else 3 - n % 4; kvb = (n // 4) % 2 if qt % 2 == 0 else 1 - (n // 4) % 2; head = n % 4 == 0
        s = vr(sb + 8*qt + 4*kvb)
        c = first_c(qt) if head else s
        mf.append(mfma(s, ar(A_K + 4*(2*ds+kvb)), vr(V_Q + 16*qt + 4*ds), c))
    return mf
def pv_mfmas(pb, zero=False):
    mf = []
    for hq in range(2):
        for n in range(16):
            dt = n // 2; qt = 2*hq + (n % 2 if dt % 2 == 0 else 1 - n % 2)
            o = ar(A_O + 16*dt + 4*qt)
            mf.append(mfma(o, ar(A_V + 4*dt), vr(pb + 4*qt), '0' if zero else o))
        for qt in (2*hq, 2*hq+1):
            l = ar(A_L + 4*qt)
            mf.append(mfma(l, ar(A_ONE), vr(pb + 4*qt), '0' if zero else l))
    return mf

def softmax_fill(s, sb, pb, e0, gaps):
    for i, g in enumerate(gaps):
        r = sb + e0 + i
        s.put(g, f'v_exp_f32 v{r}, v{r}', 'v', 2)
    return [(gaps[i] + 1, f'v_cvt_pk_bf16_f32 v{pb + (e0+i)//2}, v{sb+e0+i-1}, v{sb+e0+i}') for i in range(1, 16, 2)]

def bg_fill(s, bg, vm, lo, hi, every=4, nextm=0):
    g = lo; vgap = -1
    while bg and g <= hi:
        kind, ins, tag = bg[0]
        if kind != 'v' and vgap == g: g += 1; continue
        if kind == 's':
            if s.sc[g]: g += 1; continue
            s.sc[g].append(ins); bg.pop(0)
            if 'm0' in ins: g += 1
        elif kind == 'm':
            if s.load[g] >= 2 or g < nextm: g += 1; continue
            s.put(g, ins, 'm'); vm.add(tag); bg.pop(0)
            s.tags.append((g, len(s.tags), tag)); vm.q[len(vm.q)-len(s.tags):] = [t for _, _, t in sorted(s.tags)]
            nextm = g + every; g += 1
        else:
            if s.load[g] + cost(ins) > 2: g += 1; continue
            s.put(g, ins, 'v', cost(ins)); bg.pop(0); vgap = g
    return nextm

def phase_qk(a, u, barrier, extra=None):
    s = Sched(qk_mfmas(V_S + 32*((u+1) % 2), lambda qt: vr(V_NM + 4*qt)))
    cv = softmax_fill(s, V_S + 32*(u % 2), V_P + 16*(u % 2), 16, [2*i for i in range(16)])
    if barrier: s.scalar(0, 's_barrier')
    t, un = u // 2, u % 2
    cvg = set(g for g, _ in cv)
    q = [(dt, jj) for dt in range(8) for jj in range(2)]
    g = 1
    while q:
        for _ in range(1 if g in cvg else 2):
            if q:
                dt, jj = q.pop(0); s.put(g, rd_v(dt, jj, t, un), 'm')
        g += 2
    for g, ins in cv: s.place(ins, 'v', g)
    s.scalar(31, 's_waitcnt lgkmcnt(0)')
    if extra: extra(s)
    s.emit(a)

def phase_pv(a, u, kreads=True, dma=True, soft=True, endwait=None, extra=None, zero=False):
    s = Sched(pv_mfmas(V_P + 16*(u % 2), zero))
    n = len(s.mf)
    cv = []
    if soft:
        cv = softmax_fill(s, V_S + 32*((u+1) % 2), V_P + 16*((u+1) % 2), 0, [1 + 2*i + (1 if i >= 8 else 0) for i in range(16)])
    if kreads:
        t, un = (u+2) // 2, u % 2
        for f in range(8): s.place(rd_k(f, t, un), 'm', 2*f)
    if dma:
        slot = (u // 2 + 4) % 4
        if u % 2 == 0:
            s.scalar(15, f's_add_u32 m0, s{S_M0}, {slot*16384}', 17)
            for i in range(4): g = s.place(dma_k(i), 'm', 19 + 4*i)
            s.scalar(g + 1, f's_add_u32 s{S_KO}, s{S_KO}, 16384', n - 2)
        else:
            s.scalar(15, f's_add_u32 m0, s{S_M0}, {LDS_V + slot*16384}', 17)
            for i in range(4): g = s.place(dma_v(i), 'm', 19 + 4*i)
            s.scalar(g + 1, f's_add_u32 s{S_VO}, s{S_VO}, 16384', n - 2)
    for g, ins in cv: s.place(ins, 'v', g)
    if extra: extra(s)
    if endwait: s.scalar(n - 1, endwait() if callable(endwait) else endwait)
    s.emit(a)

def tagword(v):
    return [f'v_bfe_i32 v{v}, v0, 0, 1', f'v_and_b32 v{v}, s{S_NX}, v{v}', f'v_xor_b32 v{v}, s{S_NC}, v{v}']

def poll(a, lab, soff, slp=0):
    a(f's_mov_b32 s{S_T}, {SPIN}')
    a(f'{lab}:')
    if slp: a(f's_sleep {slp}')
    a(f'buffer_load_dword v{V_F+1}, v{V_F}, {sr(S_FL)}, {soff} offen sc1')
    a(f's_sub_u32 s{S_T}, s{S_T}, 1\ns_cbranch_scc1 {lab}_x')
    a(f's_waitcnt vmcnt(0)\nv_cmp_ne_u32 vcc, v{V_E}, v{V_F+1}\ns_nop 1\ns_cbranch_vccnz {lab}')
    a(f'{lab}_x:')

def setflag(a, soff):
    for x in tagword(V_E): a(x)
    a(f'v_lshlrev_b32 v{V_F}, 2, v0\ns_mov_b64 exec, 3')
    a(f'buffer_store_dword v{V_E}, v{V_F}, {sr(S_FL)}, {soff} offen sc1')
    a('s_mov_b64 exec, -1')

def gen_k2(k=NAME + '_kernel', ng0=2, slpx=1, p1=2, nx0=4, quiet=0, dbg=False, defer=3, rot=2, oflag=5, NB=4, srot=2, pk=8, alead=10, dfr=16, sev=4, pkd=16, bearly=28, rsd=20, amin=32, wmin=32, slp=0, slp2=0, qk='C', pev=4, npeel=4, pfg=25, hsp=(0,0,0,2,0,2,0,2), ch2=1, marks='start,gemm,loop,att,e1,ook,send,pp,end'.split(','), exp=''):
    a = Asm(); kstart(a, k); st0 = Stamps(a, dbg, 1)
    class ST:
        def mark(self, n):
            if n in marks: st0.mark()
        def flush(self, *x): st0.flush(*x)
    st = ST(); OPT['qk'] = qk
    a(f's_cmp_ge_u32 s2, 256\ns_cbranch_scc1 L{k}_end')
    a(f's_mov_b32 s{S_RETRY}, 0')
    st.mark('start')
    a(f'L{k}_start:')
    a(f's_load_dwordx2 s[{S_PX}:{S_PX+1}], s[0:1], 0')
    a('s_load_dwordx2 s[92:93], s[0:1], 80')
    a('s_load_dwordx2 s[4:5], s[0:1], 88')
    a('s_load_dwordx2 s[16:17], s[0:1], 24')
    a('s_load_dwordx4 s[20:23], s[0:1], 48')
    a('s_load_dwordx4 s[8:11], s[0:1], 8')
    a('s_memrealtime s[6:7]')
    a(f's_load_dwordx2 s[{S_PWO}:{S_PWO+1}], s[0:1], 32')
    a(f's_load_dwordx4 s[{S_PWD}:{S_PWD+3}], s[0:1], 64')
    a(f's_getpc_b64 s[{S_CD}:{S_CD+1}]\nL{k}_pc0:\ns_mov_b32 s{S_CD+2}, L{k}_codeend-L{k}_pc0\ns_mov_b32 s{S_CD+3}, 0x20000')
    a(f'v_lshrrev_b32 v2, 4, v0\nv_lshlrev_b32 v2, 7, v2\ns_lshr_b32 s{S_T}, s2, 3\ns_lshl_b32 s{S_T}, s{S_T}, 11')
    a(f'buffer_load_dword v23, v2, {sr(S_CD)}, s{S_T} offen')
    a('v_lshrrev_b32 v50, 5, v0')
    a('v_lshrrev_b32 v1, 6, v0\nv_and_b32 v0, 63, v0')
    a(f'v_readfirstlane_b32 s{S_W}, v1')
    a(f's_and_b32 s{S_HEAD}, s2, 7\ns_lshl_b32 s{S_HEAD}, s{S_HEAD}, 2\ns_bfe_u32 s{S_T}, s2, 0x20003\ns_add_u32 s{S_HEAD}, s{S_HEAD}, s{S_T}')
    a(f's_lshr_b32 s{S_QB}, s2, 5')
    if rot == 1: a(f's_lshl_b32 s{S_T}, s{S_T}, 1\ns_add_u32 s{S_EQ}, s{S_T}, s{S_QB}\ns_and_b32 s{S_EQ}, s{S_EQ}, 7')
    elif rot == 2: a(f's_and_b32 s{S_EQ}, s{S_T}, 2\ns_lshl_b32 s{S_EQ}, s{S_EQ}, 1')
    elif rot == 3: a(f's_lshl_b32 s{S_EQ}, s{S_T}, 1')
    else: a(f's_mov_b32 s{S_EQ}, 0')
    a(f's_mov_b32 s{S_EX}, s{S_EQ}\ns_mov_b32 s3, s{S_EQ}')
    a('v_and_b32 v51, 31, v0\nv_bfe_u32 v52, v0, 2, 3\nv_and_b32 v53, 3, v0\nv_lshlrev_b32 v54, 10, v50\nv_lshl_add_u32 v54, v52, 6, v54\nv_lshl_add_u32 v54, v53, 3, v54')
    a(f's_lshl_b32 s{S_T}, s{S_QB}, 5\ns_add_u32 s{S_T}, s{S_T}, s{S_HEAD}\ns_lshl_b32 s{S_T}, s{S_T}, 13\ns_lshl_b32 s{S_T+1}, s{S_QB}, 5')
    a(f'v_and_b32 v55, 1, v0\nv_lshlrev_b32 v55, 2, v55')
    a('s_waitcnt lgkmcnt(0)')
    a(f's_mov_b32 s32, s{S_PX}\ns_mov_b32 s33, s{S_PX+1}\ns_mov_b32 s34, {XN_BYTES}\ns_mov_b32 s35, 0x20000\ns_movk_i32 s94, 256\ns_mov_b32 s95, 0x20000')
    a(f's_cmp_lg_u32 s{S_RETRY}, 0\ns_cbranch_scc1 L{k}_nox')
    for i, off in enumerate((0, 32, 512, 544)): a(f'buffer_load_dwordx2 v[{64+2*i}:{65+2*i}], v54, s[32:35], s{S_T} offen offset:{off}')
    if 'b' not in exp: a('s_barrier')
    a(f's_cmp_lt_u32 s{S_W}, 2\ns_cbranch_scc1 L{k}_nox')
    a(f's_xor_b32 s{S_T+2}, s{S_W}, 2\ns_or_b32 s{S_T+2}, s{S_T+2}, s{S_HEAD}\ns_lshl_b32 s{S_T+2}, s{S_T+2}, 8\ns_add_u32 s{S_T+2}, s{S_T+2}, s{S_T+1}')
    a(f'v_mov_b32 v56, s6\nv_mov_b32 v57, s7\nv_or_b32 v56, 1, v56\nv_or_b32 v57, 0x40000000, v57\nv_mov_b32 v58, 0\ns_mov_b64 exec, 1')
    a(f'buffer_store_dwordx2 v[56:57], v58, s[92:95], s{S_T+2} offen sc1\ns_mov_b64 exec, -1')
    a(f's_lshl_b32 s{S_T+2}, s{S_QB}, 1\ns_add_u32 s{S_T+2}, s{S_T+2}, s{S_W}\ns_sub_u32 s{S_T+2}, s{S_T+2}, 2\ns_mul_i32 s{S_T+2}, s{S_T+2}, {4*p1}')
    a(f's_lshl_b32 s{S_T+3}, s{S_EQ}, 6\ns_add_u32 s{S_T+2}, s{S_T+2}, s{S_T+3}')
    a(f'v_lshrrev_b32 v56, 1, v0\nv_min_u32 v56, {4*p1-1}, v56\nv_add_u32 v56, s{S_T+2}, v56\nv_and_b32 v56, 511, v56\nv_lshlrev_b32 v57, 13, v56\nv_lshl_add_u32 v57, v55, 5, v57')
    a(f's_mov_b32 s18, {512*8192}\ns_mov_b32 s19, 0x20000\ns_lshl_b32 s{S_T+3}, s{S_HEAD}, 8')
    a(f'buffer_load_dword v23, v57, s[16:19], s{S_T+3} offen')
    a(f'v_mul_u32_u24 v57, 2752, v56\nv_mad_u32_u24 v57, v55, 23, v57\ns_mul_i32 s{S_T+3}, s{S_HEAD}, 96')
    a(f's_mov_b32 s32, s20\ns_mov_b32 s33, s21\ns_mov_b32 s34, {512*2752}')
    a(f'buffer_load_dword v23, v57, s[32:35], s{S_T+3} offen')
    a('s_mov_b32 s32, s22\ns_mov_b32 s33, s23')
    a(f'buffer_load_dword v23, v57, s[32:35], s{S_T+3} offen')
    a(f'L{k}_nox:')
    st.mark('karg')
    a(f's_lshl_b32 s{S_M0}, s{S_W}, 12')
    a('v_and_b32 v40, 15, v0\nv_lshrrev_b32 v41, 4, v0\nv_lshrrev_b32 v42, 2, v0\nv_and_b32 v43, 3, v0')
    a(f's_lshl_b32 s{S_T}, s{S_W}, 4')
    a(f'v_add_u32 v44, s{S_T}, v41')
    a('v_lshlrev_b32 v45, 1, v41\nv_xor_b32 v45, v45, v40\nv_lshlrev_b32 v45, 4, v45')
    a('v_xor_b32 v46, 128, v45')
    a(f'v_lshl_add_u32 v{V_DQ}, v44, 13, v45\nv_lshl_add_u32 v{V_DQ+1}, v44, 13, v46')
    a(f'v_add_u32 v{V_DQ+1}, {4*8192-1024}, v{V_DQ+1}')
    a(f'v_add_u32 v{V_DQ+2}, {8*8192-2048}, v{V_DQ}\nv_add_u32 v{V_DQ+3}, {8*8192-2048}, v{V_DQ+1}')
    a(f'v_lshl_add_u32 v{V_DV}, v44, 8, v45\nv_lshl_add_u32 v{V_DV+1}, v44, 8, v46')
    a(f'v_lshlrev_b32 v{V_XN}, 4, v0')
    a(f's_and_b32 s{S_T}, s{S_W}, 1\ns_mul_i32 s{S_T}, s{S_T}, 192\ns_mul_i32 s{S_T+1}, s{S_HEAD}, 96\ns_mov_b32 s{S_T+2}, 10923\ns_movk_i32 s{S_T+3}, 2752')
    for i in range(3):
        a(f'v_add_u32 v45, s{S_T}, v0')
        if i: a(f'v_add_u32 v45, {64*i}, v45')
        a(f'v_mul_u32_u24 v46, s{S_T+2}, v45\nv_lshrrev_b32 v46, 16, v46')
        a('v_mul_u32_u24 v47, 6, v46\nv_sub_u32 v47, v45, v47')
        a(f'v_lshl_add_u32 v47, v47, 4, s{S_T+1}')
        a(f'v_mad_u32_u24 v48, v46, s{S_T+3}, v47')
        if i: a(f'v_subrev_u32 v48, {1024*i}, v48')
        a(f'v_cmp_gt_u32 vcc, s{S_T+3}, v47\nv_mov_b32 v49, 0x40000000\ns_nop 0')
        a(f'v_cndmask_b32 v{V_DG+i}, v49, v48, vcc')
    a(f's_and_b32 s{S_MG}, s{S_W}, 1\ns_mul_i32 s{S_MG}, s{S_MG}, 3072\ns_lshr_b32 s{S_T}, s{S_W}, 1\ns_mul_i32 s{S_T}, s{S_T}, 6144')
    a(f's_add_u32 s{S_MG}, s{S_MG}, s{S_T}\ns_add_u32 s{S_MG}, s{S_MG}, {LDS_V}')
    a(f's_lshl_b32 s{S_T+4}, s{S_QB}, 4\ns_lshl_b32 s{S_T+1}, s{S_W}, 2\ns_add_u32 s{S_T+4}, s{S_T+4}, s{S_T+1}')
    a(f's_lshl_b32 s{S_T}, s{S_HEAD}, 8')
    a(f's_add_u32 s16, s16, s{S_T}\ns_addc_u32 s17, s17, 0\ns_sub_u32 s18, {512*8192}, s{S_T}\ns_mov_b32 s19, 0x20000')
    a(f's_cmp_ge_u32 s{S_W}, 2\ns_cselect_b32 s20, s22, s20\ns_cselect_b32 s21, s23, s21\ns_mov_b32 s22, {512*2752}\ns_mov_b32 s23, 0x20000')
    a(f's_lshl_b32 s{S_T+1}, s{S_T+4}, 14')
    a(f's_add_u32 s24, s4, s{S_T+1}\ns_addc_u32 s25, s5, 0\ns_mov_b32 s26, 0x10000\ns_mov_b32 s27, 0x20000')
    a(f's_add_u32 s{S_FL}, s4, {WS_FLAG}\ns_addc_u32 s{S_FL+1}, s5, 0\ns_mov_b32 s{S_FL+2}, {FLAG_BYTES}\ns_mov_b32 s{S_FL+3}, 0x20000')
    a(f's_cmp_lg_u32 s{S_RETRY}, 0\ns_cbranch_scc1 L{k}_noln')
    LE = 2*LDS_V
    a(f's_lshl_b32 s{S_T+1}, s{S_QB}, 5\ns_cmp_lt_u32 s{S_W}, 2\ns_cbranch_scc1 L{k}_w0\ns_waitcnt vmcnt(4)\ns_branch L{k}_w1')
    a(f'L{k}_w0:\ns_waitcnt vmcnt(0)')
    a(f'L{k}_w1:')

    st.mark('xin')
    X = 80
    for r in range(8): a(f'v_lshlrev_b32 v{X+2*r}, 16, v{64+r}\nv_and_b32 v{X+2*r+1}, 0xffff0000, v{64+r}')
    def red32(r):
        a(f'v_add_f32 v{r}, v{r}, v{r+1}')
        for sh in (8, 4, 2, 1): a(f's_nop 1\nv_add_f32_dpp v{r}, v{r}, v{r} row_ror:{sh} row_mask:0xf bank_mask:0xf')
        a(f'v_mov_b32 v{r+1}, v{r}\ns_nop 1\nv_permlane16_swap_b32 v{r}, v{r+1}\ns_nop 1\nv_add_f32 v{r}, v{r}, v{r+1}\nv_mul_f32 v{r}, 0x3b000000, v{r}')
    for r in range(4): a(f'v_pk_add_f32 {vr(100+2*r,2)}, {vr(X+4*r,2)}, {vr(X+4*r+2,2)}')
    a('v_pk_add_f32 v[100:101], v[100:101], v[102:103]\nv_pk_add_f32 v[104:105], v[104:105], v[106:107]\nv_pk_add_f32 v[72:73], v[100:101], v[104:105]')
    red32(72)
    for r in range(8): a(f'v_pk_add_f32 {vr(100+2*r,2)}, {vr(X+2*r,2)}, v[72:73] op_sel_hi:[1,0] neg_lo:[0,1] neg_hi:[0,1]')
    a('v_pk_mul_f32 v[74:75], v[100:101], v[100:101]\nv_pk_mul_f32 v[76:77], v[102:103], v[102:103]')
    for r in range(2, 8): a(f'v_pk_fma_f32 {vr(74+2*(r%2),2)}, {vr(100+2*r,2)}, {vr(100+2*r,2)}, {vr(74+2*(r%2),2)}')
    a('v_pk_add_f32 v[74:75], v[74:75], v[76:77]')
    red32(74)
    a('v_cvt_pk_bf16_f32 v73, v72, v74\nv_lshlrev_b32 v72, 16, v73\nv_and_b32 v74, 0xffff0000, v73\nv_add_f32 v74, 0x3727c5ac, v74')
    a('v_cvt_pk_bf16_f32 v74, v74, v74\nv_and_b32 v74, 0xffff0000, v74\nv_sqrt_f32 v74, v74')
    for r in range(8): a(f'v_pk_add_f32 {vr(X+2*r,2)}, {vr(X+2*r,2)}, v[72:73] op_sel_hi:[1,0] neg_lo:[0,1] neg_hi:[0,1]')
    a('v_cvt_pk_bf16_f32 v74, v74, v74\nv_and_b32 v74, 0xffff0000, v74\nv_rcp_f32 v76, v74')
    for r in range(8): a(f'v_cvt_pk_bf16_f32 v{64+r}, v{X+2*r}, v{X+2*r+1}')
    for r in range(8): a(f'v_lshlrev_b32 v{X+2*r}, 16, v{64+r}\nv_and_b32 v{X+2*r+1}, 0xffff0000, v{64+r}')
    for r in range(8): a(f'v_pk_mul_f32 {vr(100+2*r,2)}, {vr(X+2*r,2)}, v[76:77] op_sel_hi:[1,0]')
    for r in range(8): a(f'v_pk_fma_f32 {vr(X+2*r,2)}, {vr(100+2*r,2)}, v[74:75], {vr(X+2*r,2)} op_sel_hi:[1,0,1] neg_lo:[1,0,0] neg_hi:[1,0,0]')
    for r in range(8): a(f'v_pk_fma_f32 {vr(100+2*r,2)}, {vr(X+2*r,2)}, v[76:77], {vr(100+2*r,2)} op_sel_hi:[1,0,1]')
    for r in range(8): a(f'v_cvt_pk_bf16_f32 v{64+r}, v{100+2*r}, v{101+2*r}')
    a(f'v_lshlrev_b32 v51, 7, v51\nv_lshl_add_u32 v51, v50, 4, v51\nv_add_u32 v51, {LE}, v51')
    a('ds_write_b128 v51, v[64:67]\nds_write_b128 v51, v[68:71] offset:4096')
    st.mark('lnc')
    a(f'v_add_u32 v53, s{S_M0}, v{V_XN}\nv_add_u32 v53, {LE}, v53')
    a('s_waitcnt lgkmcnt(0)\ns_barrier')
    st.mark('lnb')
    a(f's_cmp_ge_u32 s{S_W}, 2\ns_cbranch_scc1 L{k}_nost')
    for i in range(4): a(f'ds_read_b128 {vr(64+4*i)}, v53 offset:{1024*i}')
    a(f's_mov_b32 s32, s4\ns_mov_b32 s33, s5\ns_mov_b32 s34, {XN_BYTES}')
    a(f's_lshl_b32 s{S_T}, s{S_QB}, 4\ns_lshr_b32 s{S_T+1}, s{S_HEAD}, 1\ns_add_u32 s{S_T}, s{S_T}, s{S_T+1}\ns_lshl_b32 s{S_T}, s{S_T}, 1\ns_add_u32 s{S_T}, s{S_T}, s{S_W}\ns_lshl_b32 s{S_T}, s{S_T}, 13')
    a(f's_and_b32 s{S_T+1}, s{S_HEAD}, 1\ns_lshl_b32 s{S_T+1}, s{S_T+1}, 7\ns_add_u32 s{S_T}, s{S_T}, s{S_T+1}\ns_add_u32 s{S_T+1}, s{S_T}, 4096')
    a('v_lshrrev_b32 v56, 3, v0\nv_and_b32 v57, 7, v0\nv_lshlrev_b32 v56, 8, v56\nv_lshl_add_u32 v56, v57, 4, v56')
    for i in range(4):
        a(f's_waitcnt lgkmcnt({3-i})')
        a(f'buffer_store_dwordx4 {vr(64+4*i)}, v56, s[32:35], s{S_T+(i>>1)} offen offset:{2048*(i&1)} sc1')
    a(f's_lshl_b32 s{S_T}, s{S_QB}, 2\ns_lshr_b32 s{S_T+1}, s{S_HEAD}, 3\ns_add_u32 s{S_T}, s{S_T}, s{S_T+1}\ns_lshl_b32 s{S_T}, s{S_T}, 10')
    a(f's_and_b32 s{S_T+1}, s{S_HEAD}, 7\ns_lshl_b32 s{S_T+1}, s{S_T+1}, 1\ns_add_u32 s{S_T+1}, s{S_T+1}, s{S_W}\ns_lshl_b32 s{S_T+1}, s{S_T+1}, 3\ns_add_u32 s{S_T}, s{S_T}, s{S_T+1}\ns_add_u32 s{S_T}, s{S_T}, {FL_X}')
    a(f'L{k}_nost:')
    a(f's_mov_b32 s{S_T+2}, {SPIN}\ns_lshl_b32 s{S_T+1}, s{S_QB}, 5')
    a(f's_load_dwordx2 s[{S_NC}:{S_NC+1}], s[92:93], s{S_T+1}\ns_waitcnt lgkmcnt(0)')
    a(f'L{k}_tagw:')
    a(f's_min_u32 s{S_T+3}, s{S_NC}, s{S_NC+1}\ns_cmp_lg_u32 s{S_T+3}, 0\ns_cbranch_scc1 L{k}_tagx\ns_sub_u32 s{S_T+2}, s{S_T+2}, 1\ns_cbranch_scc1 L{k}_tagx')
    a(f'buffer_load_dword v59, v55, s[92:95], s{S_T+1} offen sc1\ns_waitcnt vmcnt(0)')
    a(f'v_readlane_b32 s{S_NC}, v59, 0\nv_readlane_b32 s{S_NC+1}, v59, 1\ns_nop 3\ns_branch L{k}_tagw')
    a(f'L{k}_tagx:')
    st.mark('tag')
    a(f's_xor_b32 s{S_NX}, s{S_NX}, s{S_NC}')
    a(f's_cmp_ge_u32 s{S_W}, 2\ns_cbranch_scc1 L{k}_noln')
    for x in tagword(61): a(x)
    a('v_lshrrev_b32 v56, 1, v0\nv_lshl_add_u32 v56, v56, 7, v55')
    a('s_mov_b64 exec, 0xffff\ns_waitcnt vmcnt(0)')
    a(f'buffer_store_dword v61, v56, {sr(S_FL)}, s{S_T} offen sc1\ns_mov_b64 exec, -1')
    a(f'L{k}_noln:')
    st.mark('pub')

    vm = VM()
    def sub_ops(kind, e):
        ops = []; tag = (kind, e)
        if kind == 'q':
            ops += [('s', f's_add_u32 m0, s{S_M0}, {(e%4)*16384}', None), ('s', f's_lshl_b32 s{S_T}, s{S_EQ}, 19', None)]
            ops += [('m', f'buffer_load_dwordx4 v{V_DQ+i}, {sr(S_WQ)}, s{S_T} offen offset:{1024*i} lds', tag) for i in range(4)]
            ops += [('s', f's_add_u32 s{S_EQ}, s{S_EQ}, 1', None), ('s', f's_and_b32 s{S_EQ}, s{S_EQ}, 7', None)]
        elif kind == 'u':
            ops += [('s', f's_add_u32 m0, s{S_MG}, {(e%4)*16384}', None), ('s', f's_mul_i32 s{S_T}, s3, {64*2752}', None)]
            ops += [('m', f'buffer_load_dwordx4 v{V_DG+i}, {sr(S_GU)}, s{S_T} offen offset:{1024*i} lds', tag) for i in range(3)]
            ops += [('s', 's_add_u32 s3, s3, 1', None), ('s', 's_and_b32 s3, s3, 7', None)]
        elif kind == 'K':
            ops += [('s', f's_add_u32 m0, s{S_M0}, {(e%4)*16384}', None)]
            ops += [('m', dma_k(i), tag) for i in range(4)]
            ops += [('s', f's_add_u32 s{S_KO}, s{S_KO}, 16384', None)]
        elif kind == 'V':
            ops += [('s', f's_add_u32 m0, s{S_M0}, {LDS_V + ((e+1)%4)*16384}', None)]
            ops += [('m', dma_v(i), tag) for i in range(4)]
            ops += [('s', f's_add_u32 s{S_VO}, s{S_VO}, 16384', None)]
        elif kind == 'f':
            ops += [('s', f's_lshl_b32 s{S_T}, s{S_QB}, 2', None), ('s', f's_add_u32 s{S_T}, s{S_T}, s{S_W}', None), ('s', f's_lshl_b32 s{S_T}, s{S_T}, 11', None),
                    ('v', f'v_and_b32 v{V_F}, 15, v0', None), ('v', f'v_lshlrev_b32 v{V_F}, 7, v{V_F}', None),
                    ('m', f'buffer_load_dword v{V_F+1}, v{V_F}, {sr(S_K)}, s{S_T} offen', tag),
                    ('m', f'buffer_load_dword v{V_F+1}, v{V_F}, {sr(S_V)}, s{S_T} offen', tag)]
        elif kind == 'x':
            if e % 2 == 0:
                ops += [('s', f's_lshl_b32 s{S_XO}, s{S_EX}, 11', None)]
                ops += [('s', f's_add_u32 s{S_XO+qt}, s{S_XO}, {16384*qt}', None) for qt in range(1, 4)]
                ops += [('s', f's_add_u32 s{S_EX}, s{S_EX}, 1', None), ('s', f's_and_b32 s{S_EX}, s{S_EX}, 7', None)]
            ops += [('m', f'buffer_load_dwordx4 {xb(e,qt)}, v{V_XN}, {sr(S_XN)}, s{S_XO+qt} offen offset:{1024*(e%2)} sc1', tag) for qt in range(4)]
        return ops
    def emit_ops(ops):
        prev = ''
        for kind, ins, tag in ops:
            if kind == 'm' and 'm0' in prev: a('s_nop 0')
            a(ins); prev = ins
            if kind == 'm': vm.add(tag)
    def xb(ks, qt): return ar(A_XB + 16*(ks % 8) + 4*qt)
    for e in range(ng0): emit_ops(sub_ops('q', e) + sub_ops('u', e))
    a('v_xor_b32 v45, v40, v41\nv_lshlrev_b32 v45, 4, v45')
    a(f'v_lshl_add_u32 v{V_DK}, v44, 8, v45')
    for i in range(1, 4): a(f'v_xor_b32 v{V_DK+i}, {64*i}, v{V_DK}')
    a(f'v_lshl_add_u32 v60, v40, 8, v45')
    a('v_and_b32 v45, 7, v42\nv_lshlrev_b32 v45, 1, v45')
    a(f'v_xor_b32 v46, v45, v43\nv_lshlrev_b32 v46, 4, v46\nv_lshl_add_u32 v{V_RQ}, v42, 8, v46')
    for i in range(1, 4): a(f'v_xor_b32 v{V_RQ+i}, {64*i}, v{V_RQ}')
    a('v_lshrrev_b32 v46, 1, v43\nv_xor_b32 v46, v45, v46\nv_lshlrev_b32 v46, 4, v46\nv_lshl_add_u32 v46, v42, 8, v46')
    a(f'v_and_b32 v47, 1, v43\nv_lshl_add_u32 v46, v47, 3, v46\nv_add_u32 v{V_RV}, {LDS_V}, v46')
    for i in range(1, 8): a(f'v_xor_b32 v{V_RV+i}, {32*i}, v{V_RV}')
    a(f'v_mul_u32_u24 v46, 96, v42\nv_lshl_add_u32 v46, v43, 3, v46\nv_add_u32 v{V_RG}, {LDS_V}, v46')
    a(f's_lshl_b32 s{S_T+1}, s{S_HEAD}, 19')
    a(f's_add_u32 s12, s10, s{S_T+1}\ns_addc_u32 s13, s11, 0\ns_mov_b32 s14, 0x80000\ns_mov_b32 s15, 0x20000')
    a(f's_add_u32 s8, s8, s{S_T+1}\ns_addc_u32 s9, s9, 0\ns_mov_b32 s10, 0x80000\ns_mov_b32 s11, 0x20000')
    if p1 < 8:
        n2 = 8 - p1
        a(f's_add_u32 s{S_T+2}, s{S_EX}, {p1}\ns_lshl_b32 s{S_T+2}, s{S_T+2}, 6\ns_mul_i32 s{S_T+3}, s{S_QB}, {8*n2}\ns_add_u32 s{S_T+2}, s{S_T+2}, s{S_T+3}')
        a(f's_mul_i32 s{S_T+3}, s{S_W}, {2*n2}\ns_add_u32 s{S_T+3}, s{S_T+3}, s{S_T+2}')
        a(f'v_lshrrev_b32 v56, 1, v0\nv_min_u32 v57, {2*n2-1}, v56\nv_add_u32 v57, s{S_T+3}, v57\nv_and_b32 v57, 511, v57\nv_lshlrev_b32 v57, 13, v57\nv_lshl_add_u32 v57, v55, 5, v57')
        a(f's_and_b32 s{S_T+3}, s{S_W}, 1\ns_mul_i32 s{S_T+3}, s{S_T+3}, {4*n2}\ns_add_u32 s{S_T+3}, s{S_T+3}, s{S_T+2}\ns_mul_i32 s{S_T+2}, s{S_HEAD}, 96')
        a(f'v_min_u32 v58, {4*n2-1}, v56\nv_add_u32 v58, s{S_T+3}, v58\nv_and_b32 v58, 511, v58\nv_mul_u32_u24 v58, 2752, v58\nv_mad_u32_u24 v58, v55, 23, v58\nv_add_u32 v58, s{S_T+2}, v58')
    a(f's_lshl_b32 s{S_T+2}, s{S_QB}, 2\ns_add_u32 s{S_T+2}, s{S_T+2}, s{S_W}\ns_lshl_b32 s{S_T+2}, s{S_T+2}, 3\ns_and_b32 s{S_T+3}, s2, 7\ns_add_u32 s{S_T+2}, s{S_T+2}, s{S_T+3}\ns_lshl_b32 s{S_T+2}, s{S_T+2}, 7\ns_add_u32 s{S_T+2}, s{S_T+2}, {FL_X}')
    for x in tagword(V_E): a(x)
    a(f'v_and_b32 v{V_F}, 31, v0\nv_lshlrev_b32 v{V_F}, 2, v{V_F}')
    poll(a, f'L{k}_px', f's{S_T+2}', slpx)
    st.mark('xok')
    for e in range(nx0): emit_ops(sub_ops('x', e))
    a('v_mov_b32 v22, v60')
    a(f's_lshl_b32 s{S_T+3}, s{S_T+4}, 10\ns_lshl_b32 s{S_T+2}, s{S_T+4}, 9\ns_add_u32 s{S_T+2}, s{S_T+2}, {WS_H}')
    a(f's_add_u32 s28, s4, s{S_T+2}\ns_addc_u32 s29, s5, 0\ns_mov_b32 s30, {85*65536+2048}\ns_mov_b32 s31, 0x20000')
    a(f's_add_u32 s{S_T+1}, s{S_T+1}, s{S_T+3}\ns_add_u32 s{S_T+1}, s{S_T+1}, {WS_O}')
    a(f's_add_u32 s32, s4, s{S_T+1}\ns_addc_u32 s33, s5, 0\ns_mov_b32 s34, {3*131072+4096}\ns_mov_b32 s35, 0x20000')
    a(f's_mov_b32 s{S_KO}, 0\ns_mov_b32 s{S_VO}, 0\ns_mov_b32 s{S_SC}, {QSCALE}\ns_mov_b32 s{S_SC+1}, {QSCALE}')
    st.mark('setup')
    e0 = 8 - defer
    items = [(e, t) for e in range(e0) for t in range(14)]
    items += [(e, t) for e in range(e0, 8) for t in range(8, 14)]
    n_gu_end = len(items)
    items += [(e, t) for e in range(e0, 8) for t in range(8)]
    NI = len(items); LA = 2
    def res(n): e, t = items[n]; return ('q' if t < 8 else 'u', e)
    first = {}; last = {}; xlast = {}; xfirst = {}
    for n in range(NI):
        first.setdefault(res(n), n); last[res(n)] = n
        xfirst.setdefault(items[n][0], n); xlast[items[n][0]] = n
    def wa(n, kk): return A_WA + 8*(n % 4) + 4*kk
    def rd_w(n, kk, jj):
        e, t = items[n]; base = (e % 4) * 16384
        row = 32*kk + 16*jj
        d = ar(wa(n, kk) + 2*jj, 2)
        if t < 8: return f'ds_read_b64_tr_b16 {d}, v{V_RQ+(t>>1)} offset:{base + row*256 + 8*(t&1)}'
        ft, up = (t-8) >> 1, (t-8) & 1
        return f'ds_read_b64_tr_b16 {d}, v{V_RG} offset:{base + row*96 + 32*ft + 6144*up}'
    def acc(t, qt):
        if t < 8: return vr(V_Q + 32*qt + 4*t)
        return vr(V_GU + 32*((t-8) >> 1) + 16*((t-8) & 1) + 4*qt)
    units = []
    for e in range(ng0, 8):
        units += [(first[('q', e)], ('q', e), ('q', e-4)), (first[('u', e)], ('u', e), ('u', e-4))]
    for ks in range(nx0, 16): units.append((xfirst[ks // 2] + LA - 1, ('x', ks), ('x', ks-8)))
    units.sort(key=lambda z: z[0])
    units += [(NI, ('K', 0), ('q', 4)), (NI+1, ('V', 0), ('u', 5)), (NI+2, ('K', 1), ('q', 5)), (NI+3, ('V', 1), ('u', 6))]
    freed = set([(kd_, e) for kd_ in 'qux' for e in range(-8, 0)])
    visible = set([(x, e) for x in 'qu' for e in range(ng0)])
    hm = []; hst = []
    for ft, dst in ((1, (208, 212)), (0, (216, 220)), (2, (224, 232))):
        G = V_GU + 32*ft; U = G + 16
        hst += [('s', f's_mul_i32 s3, s{S_HEAD}, {3*65536}', None), ('s', f's_add_u32 s3, s3, {ft*65536}', None)]
        if ft == 2: n_hm01 = len(hm)
        for h in range(2):
            R = range(8*h, 8*h + 8)
            hm += [('v', f'v_mul_f32 v{G+r}, 0xbfb8aa3b, v{G+r}', None) for r in R]
            hm += [('v', f'v_exp_f32 v{G+r}, v{G+r}', None) for r in R]
            hm += [('v', f'v_add_f32 v{G+r}, 1.0, v{G+r}', None) for r in R]
            hm += [('v', f'v_rcp_f32 v{G+r}, v{G+r}', None) for r in R]
            hm += [('v', f'v_mul_f32 v{G+r}, v{G+r}, v{U+r}', None) for r in R]
            hm += [('v', f'v_cvt_pk_bf16_f32 v{dst[h]+r}, v{G+8*h+2*r}, v{G+8*h+2*r+1}', None) for r in range(4)]
            hst += [('m', f'buffer_store_dwordx4 {vr(dst[h])}, v{V_XN}, {sr(S_H)}, s3 offen offset:{1024*h}' + ('' if 'h' in exp else ' sc1'), ('h', 0))]
    n_hm2 = len(hm) - n_hm01
    a(f's_waitcnt vmcnt({vm.wait(("u",ng0-1))})\ns_barrier')
    st.mark('first')
    if p1 < 8:
        emit_ops([('m', f'buffer_load_dword v23, v57, {sr(S_WQ)}, 0 offen', ('pf', 0)), ('m', f'buffer_load_dword v23, v58, {sr(S_GU)}, 0 offen', ('pf', 0))])
    for n in range(LA):
        for kk in range(2):
            for jj in range(2): a(rd_w(n, kk, jj))
    a(f's_waitcnt vmcnt({vm.wait(("x",1))}) lgkmcnt(4)')
    pend = []; rk_done = False; rkq = []; carry = 0
    cnt = lambda r_: 3 if r_[0] == 'u' else 4
    for n in range(NI):
        e, t = items[n]
        st.mark(f'i{n}')
        mf = []
        for qi in range(4):
            qt = qi if n % 2 == 0 else 3 - qi
            for ki in range(2):
                kk = ki if qi % 2 == 0 else 1 - ki
                mf.append((qt, kk, ki))
        if not ch2: mf = [(qt, 0, 0) for qt in range(4)] + [(3 - qt, 1, 1) for qt in range(4)]
        s = Sched([mfma(acc(t, qt), ar(wa(n, kk)), xb(2*e + kk, qt), acc(t, qt) if (e > 0 or ki > 0) else '0') for qt, kk, ki in mf])
        m = n + LA; bar = False
        for ee, nl in xlast.items():
            if nl < n: freed |= set([('x', 2*ee), ('x', 2*ee + 1)])
        if m < NI:
            if res(m) not in visible:
                want = [res(m)]
                other = ('u' if res(m)[0] == 'q' else 'q', res(m)[1])
                if other not in visible and vm.count(other) == cnt(other): want.append(other)
                assert vm.count(res(m)) == cnt(res(m)), (n, res(m))
                w = vm.wait(*want)
                s.sc[0] += [f's_waitcnt vmcnt({w})']; s.sc[1] += ['s_barrier']; bar = True
                for r_ in set(vm.q[:len(vm.q) - w]) - set(vm.q[len(vm.q) - w:]):
                    if r_[0] in 'qu' and vm.count(r_) == cnt(r_): visible.add(r_)
            for kk in range(2):
                for jj in range(2): s.put(1 + 3*kk, rd_w(m, kk, jj), 'm')
        if not bar and units and units[0][2] not in freed and units[0][2][0] in 'qu' and last[units[0][2]] <= n and not pend and n + 4 < NI and units[0][0] >= NI:
            s.sc[1] += ['s_barrier']; bar = True
        s.sc[7].append('PLACEHOLDER')
        lo = 0
        if bar:
            lo = 2
            for r_, nl in last.items():
                if nl <= n: freed.add(r_)
        while units and units[0][2] in freed and len(pend) < 12:
            _, r_, _ = units.pop(0); pend += sub_ops(*r_)
        if n >= quiet: carry = bg_fill(s, pend, vm, lo, 6, every=pev, nextm=carry) - 8
        if vm.count(('q', 7)) == 4 and not rk_done:
            rk_done = True
            rkq += [('v', f'v_xor_b32 v{V_RK+i}, {64*i}, v22', None) for i in range(4)]
        elif rkq: bg_fill(s, rkq, vm, 0, 7)
        elif n >= n_gu_end + 1: bg_fill(s, hm, vm, 0, 7)
        pre = []
        if n + 1 < NI:
            e1 = items[n + 1][0]
            if xfirst[e1] == n + 1:
                assert vm.count(('x', 2*e1)) == 4 and vm.count(('x', 2*e1 + 1)) == 4, (n, e1)
                pre.append(f'vmcnt({vm.wait(("x",2*e1),("x",2*e1+1))})')
            pre.append(f'lgkmcnt({4 if m < NI else 0})')
        else: pre.append(f'vmcnt({vm.wait(("K",0))})')
        s.sc[7] = ['s_waitcnt ' + ' '.join(pre)]
        s.emit(a)
    assert rk_done and not rkq and vm.count(('K', 0)) == 4
    st.mark('gemm')
    a('s_barrier')
    for f in range(8): a(rd_k(f, 0, 0))
    emit_ops(pend)
    for u_ in units: emit_ops(sub_ops(*u_[1]))
    emit_ops(sub_ops('K', 2))
    for i in range(16):
        for r in range(4): a(f'v_pk_mul_f32 {vr(V_Q+8*i+2*r,2)}, {vr(V_Q+8*i+2*r,2)}, {sr(S_SC,2)}')
        for r in range(4): a(f'v_cvt_pk_bf16_f32 v{V_Q+4*i+r}, v{V_Q+8*i+2*r}, v{V_Q+8*i+2*r+1}')
    a('s_waitcnt lgkmcnt(0)')
    st.mark('qcv')
    s = Sched(qk_mfmas(V_S, lambda qt: '0'))
    bg_fill(s, hm, vm, 0, 31)
    s.emit(a)
    for f in range(8): a(rd_k(f, 0, 1))
    while len(hm) > n_hm2: a(hm.pop(0)[1])
    st.mark('qk0')
    a(f's_cmp_lg_u32 s{S_RETRY}, 0\ns_cbranch_scc1 L{k}_maxpass')
    for qt in range(4):
        b = V_S + 8*qt; m = V_T + 2*qt
        a(f'v_max3_f32 v{m}, v{b}, v{b+1}, v{b+2}\nv_max3_f32 v{m+1}, v{b+3}, v{b+4}, v{b+5}\nv_max3_f32 v{m}, v{m}, v{b+6}, v{b+7}\nv_max_f32 v{m}, v{m}, v{m+1}')
    a(f'L{k}_redm:')
    a(f'v_mov_b32 v23, 0x3f803f80')
    for j, op in enumerate(('v_permlane16_swap_b32', 'v_permlane32_swap_b32')):
        for qt in range(4): a(f'v_mov_b32 v{V_T+2*qt+1}, v{V_T+2*qt}')
        a(f'v_accvgpr_write_b32 a{A_ONE+2*j}, v23\nv_accvgpr_write_b32 a{A_ONE+2*j+1}, v23')
        for qt in range(4): a(f'{op} v{V_T+2*qt}, v{V_T+2*qt+1}')
        a('s_nop 1')
        for qt in range(4): a(f'v_max_f32 v{V_T+2*qt}, v{V_T+2*qt}, v{V_T+2*qt+1}')
    for qt in range(4):
        for r in range(4): a(f'v_sub_f32 v{V_NM+4*qt+r}, 0, v{V_T+2*qt}')
    for i in range(0, 32, 2): a(f'v_pk_add_f32 {vr(V_S+i,2)}, {vr(V_S+i,2)}, {vr(V_NM+4*(i//8),2)}')
    for i in range(16): a(f'v_exp_f32 v{V_S+i}, v{V_S+i}')
    a(f's_waitcnt vmcnt({vm.wait(("K",1),("V",0))}) lgkmcnt(0)')
    for i in range(8): a(f'v_cvt_pk_bf16_f32 v{V_P+i}, v{V_S+2*i}, v{V_S+2*i+1}')
    st.mark('loop')
    late = [f's_bfe_u32 s{S_SPL}, s2, 0x20001', f's_and_b32 s{S_T}, s2, 1', f's_bfe_u32 s{S_C}, s2, 0x20003',
            f's_lshl_b32 s{S_T+1}, s{S_QB}, 1', f's_add_u32 s{S_T+1}, s{S_T+1}, s{S_T}',
            f's_lshl_b32 s{S_TILE}, s{S_T+1}, 2', f's_add_u32 s{S_TILE}, s{S_TILE}, s{S_C}',
            f's_lshl_b32 s{S_RT0}, s{S_T+1}, 3', f's_lshl_b32 s{S_T+2}, s{S_W}, 1', f's_add_u32 s{S_RT0}, s{S_RT0}, s{S_T+2}',
            f's_lshl_b32 s{S_PW}, s{S_T}, 1', f's_lshr_b32 s{S_T+2}, s{S_W}, 1', f's_add_u32 s{S_PW}, s{S_PW}, s{S_T+2}',
            f's_lshl_b32 s{S_T}, s{S_TILE}, 2', f's_add_u32 s{S_T}, s{S_T}, s{S_SPL}', f's_lshl_b32 s{S_T}, s{S_T}, 2', f's_add_u32 s{S_T}, s{S_T}, s{S_W}',
            f's_mul_i32 s{S_T}, s{S_T}, 12288', f's_add_u32 s{S_T}, s{S_T}, {WS_PART}',
            f's_add_u32 s{S_IB}, s4, s{S_T}', f's_addc_u32 s{S_IB+1}, s5, 0', f's_movk_i32 s{S_IB+2}, 12288', f's_mov_b32 s{S_IB+3}, 0x20000',
            f's_getpc_b64 s[{S_CD}:{S_CD+1}]\nL{k}_pc:', f's_add_u32 s{S_CD}, s{S_CD}, L{k}_last-L{k}_pc', f's_addc_u32 s{S_CD+1}, s{S_CD+1}, 0',
            f's_mov_b32 s{S_CD+2}, 0', f's_mov_b32 s{S_CD+3}, 0x20000', f's_lshl_b32 s{S_AJ}, s{S_W}, 13', f's_mov_b32 s{S_CNT}, 1']
    late2 = [f's_add_u32 s{S_FL}, s4, {WS_FLAG}', f's_addc_u32 s{S_FL+1}, s5, 0', f's_mov_b32 s{S_FL+2}, {FLAG_BYTES}'] + [f's_brev_b32 s{S_PF+i}, 1' for i in range(3)]
    vq = hm + [('v', f'v_lshlrev_b32 v{V_PF}, 3, v{V_XN}', None), ('v', f'v_mov_b32 v{V_PF+1}, 0', None), ('v', f'v_mov_b32 v{V_F}, 0', None)]
    vq += [('v', f'v_mov_b32 v{r}, 0', None) for r in (OV, OV+1)]
    bg = [('s', x, None) for x in late] + sub_ops('K', 3) + sub_ops('V', 2)
    def mk0(lo, hi, nst):
        def f(s):
            for _ in range(nst):
                if vm.count(('h', 0)) + sum(1 for x in bg if x[2] == ('h', 0)) >= 4: assert len(vq) <= 5, len(vq)
                while hst[0][0] == 's': bg.append(hst.pop(0))
                bg.append(hst.pop(0))
                if not hst: bg.extend([('s', x, None) for x in late2])
            bg_fill(s, bg, vm, lo, hi, 3); bg_fill(s, vq, vm, lo, hi)
        return f
    for u in range(npeel):
        if u % 2 == 1: bg += sub_ops('K', 4 + u // 2)
        st.mark(f'u{u}')
        phase_qk(a, u, barrier=(u % 2 == 0), extra=mk0(1, 30, hsp[2*u]))
        if u % 2 == 1: bg += sub_ops('V', 3 + u // 2)
        endw = (lambda: f's_waitcnt vmcnt({vm.wait(("K",2+u//2),("V",1+u//2))}) lgkmcnt(0)') if u % 2 == 1 else 's_waitcnt lgkmcnt(0)'
        phase_pv(a, u, dma=False, endwait=endw, extra=mk0(0, 34, hsp[2*u+1]), zero=(u == 0))
    assert not hst
    assert not bg and not vq, (bg, vq)
    assert vm.wait(('K', 2 + npeel // 2), ('V', 1 + npeel // 2)) >= 8
    st.mark('peeled')
    a(f's_branch L{k}_u{npeel}')
    a('.p2align 6')
    a(f'L{k}_loop:')
    pf = {0: f'buffer_load_dword v23, v{V_PF}, {sr(S_CD)}, s{S_AJ} offen',
          2: f'buffer_load_dword v23, v{V_PF}, {sr(S_WD)}, s{S_PF} offen',
          4: f'buffer_load_dword v23, v{V_PF+1}, {sr(S_ACT)}, s{S_PF+1} offen',
          6: f'buffer_load_dword v23, v{V_PF}, {sr(S_WO)}, s{S_PF+2} offen'}
    for u in range(8):
        if u == 2: a(f's_cbranch_scc1 L{k}_last')
        if u == npeel: a(f'L{k}_u{npeel}:')
        def exq(s):
            if u in pf and not (u == 0 and 'I' in exp): s.place(pf[u], 'm', pfg)
        phase_qk(a, u, barrier=(u % 2 == 0), extra=exq)
        ex = None
        if u == 1: ex = lambda s: s.scalar(4, f's_add_u32 s{S_CNT}, s{S_CNT}, 1', 8)
        endw = 's_waitcnt vmcnt(16) lgkmcnt(0)' if u % 2 == 1 else 's_waitcnt lgkmcnt(0)'
        phase_pv(a, u, endwait=endw, extra=ex)
        if u == 1: a(f's_cmp_eq_u32 s{S_CNT}, 8')
    a(f's_bitcmp1_b32 {0b1110000}, s{S_CNT}\ns_cbranch_scc0 L{k}_loop')
    a(f's_cmp_eq_u32 s{S_CNT}, 5\ns_cbranch_scc1 L{k}_lb3\ns_cmp_eq_u32 s{S_CNT}, 6\ns_cbranch_scc1 L{k}_lb4')
    st.mark('lb4')
    a(f's_lshl_b32 s{S_T}, s{S_QB}, 2\ns_add_u32 s{S_T}, s{S_T}, s{S_W}\ns_lshl_b32 s{S_T}, s{S_T}, 5\ns_add_u32 s{S_T}, s{S_T}, s{S_HEAD}\ns_lshl_b32 s{S_T}, s{S_T}, 3')
    setflag(a, f's{S_T}')
    a(f's_branch L{k}_loop')
    a(f'L{k}_lb3:')
    st.mark('lb5')
    a(f's_lshl_b32 s{S_T+1}, s{S_QB}, 2\ns_add_u32 s{S_T+1}, s{S_T+1}, s{S_PW}\ns_lshl_b32 s{S_T+1}, s{S_T+1}, 8')
    a(f'v_lshlrev_b32 v{V_F}, 2, v0')
    a(f'buffer_load_dword v{V_F+1}, v{V_F}, {sr(S_FL)}, s{S_T+1} offen sc1')
    a(f's_lshl_b32 s{S_T}, s{S_C}, 8')
    a(f's_add_u32 s{S_WD}, s{S_PWD}, s{S_T}\ns_addc_u32 s{S_WD+1}, s{S_PWD+1}, 0\ns_sub_u32 s{S_WD+2}, {1376*1024}, s{S_T}')
    a(f's_add_u32 s{S_WO}, s{S_PWO}, s{S_T}\ns_addc_u32 s{S_WO+1}, s{S_PWO+1}, 0\ns_sub_u32 s{S_WO+2}, {4096*1024}, s{S_T}')
    a(f's_mul_i32 s{S_WOF}, s{S_SPL}, {352*1024}\ns_mul_i32 s{S_AOF}, s{S_SPL}, {11*131072}')
    a(f's_lshl_b32 s{S_T}, s{S_RT0}, 9\ns_sub_u32 s{S_ACT+2}, {H_BYTES}, s{S_T}\ns_add_u32 s{S_T}, s{S_T}, {WS_H}')
    a(f's_add_u32 s{S_ACT}, s4, s{S_T}\ns_addc_u32 s{S_ACT+1}, s5, 0')
    for i in range(2):
        a(f'v_and_b32 v22, 0xff, v{V_DV+i}\nv_sub_u32 v{V_DW+i}, v{V_DV+i}, v22\nv_lshl_add_u32 v{V_DW+i}, v{V_DW+i}, 2, v22')
    a(f'v_add_u32 v{V_DW+1}, 3072, v{V_DW+1}\nv_add_u32 v{V_DW+2}, 6144, v{V_DW}\nv_add_u32 v{V_DW+3}, 6144, v{V_DW+1}')
    a(f's_lshl_b32 s{S_T}, s{S_RT0}, 6\ns_add_u32 s{S_T}, s{S_T}, s{S_C}\ns_lshl_b32 s{S_T}, s{S_T}, 2\ns_add_u32 s{S_T}, s{S_T}, s{S_SPL}\ns_lshl_b32 s{S_T}, s{S_T}, 6')
    a(f'v_and_b32 v22, 15, v0\nv_lshrrev_b32 v{OV}, 4, v0\nv_lshlrev_b32 v22, 10, v22\nv_lshl_add_u32 v22, v{OV}, 3, v22\nv_add_u32 v{OV}, s{S_T}, v22\nv_add_u32 v{OV+1}, 0x4000, v{OV}')
    a(f's_branch L{k}_loop')
    a(f'L{k}_lb4:')
    st.mark('lb6')
    a(f'v_lshrrev_b32 v{V_PF+1}, 3, v0\nv_min_u32 v{V_PF+1}, 5, v{V_PF+1}\nv_and_b32 v22, 7, v0\nv_lshlrev_b32 v22, 7, v22\nv_lshl_add_u32 v{V_PF+1}, v{V_PF+1}, 16, v22')
    for x in tagword(V_E): a(x)
    a(f'v_cmp_ne_u32 vcc, v{V_E}, v{V_F+1}\ns_nop 1\ns_cbranch_vccz L{k}_hok')
    poll(a, f'L{k}_ph', f's{S_T+1}')
    a(f'L{k}_hok:')
    a(f's_lshr_b32 s{S_T}, s2, 3\ns_lshl_b32 s{S_T}, s{S_T}, 2\ns_add_u32 s{S_T}, s{S_T}, s{S_W}\ns_lshl_b32 s{S_T}, s{S_T}, 13')
    a(f's_lshl_b32 s{S_T+1}, s{S_C}, 8\ns_sub_u32 s{S_T}, s{S_T}, s{S_T+1}')
    a(f's_lshl_b32 s{S_PF+2}, s{S_SPL}, 20\ns_add_u32 s{S_PF+2}, s{S_PF+2}, s{S_T}')
    a(f's_add_u32 s{S_T+1}, s{S_WOF}, s{S_T}\ns_cmp_lt_u32 s{S_T}, {384*1024-1024}\ns_cselect_b32 s{S_PF}, s{S_T+1}, s{S_PF}')
    if 'I' not in exp: a(f's_mov_b32 s{S_CD+2}, L{k}_end-L{k}_last')
    a(f's_mul_i32 s{S_PF+1}, s{S_C}, {3*131072}\ns_add_u32 s{S_PF+1}, s{S_PF+1}, s{S_AOF}')
    a(f's_branch L{k}_loop')

    a(f'L{k}_last:')
    vm = VM()
    for G in (30, 31, 32):
        for _ in range(8): vm.add(('G', G))
    def w_ops(srd_, pair, slot, half, tag):
        ops = [('s', f's_add_u32 m0, s{S_M0}, {half*LDS_V + slot*16384 if slot < 4 else 2*LDS_V + half*16384}', None)]
        ops += [('m', dma_w(i, srd_), tag) for i in range(4)]
        if tag[0] == 'P' and srot == 2:
            n1 = 2*tag[1] + half + 1
            ops += [('s', f's_add_u32 s{S_WOF}, s{S_WOF}, 65536', None), ('s', f's_and_b32 s{S_WOF}, s{S_WOF}, 0x30000', None),
                    ('s', f's_add_u32 s{S_WOF}, s{S_WOF}, s{S_WJ}', None)]
            if n1 % 4 == 3: ops += [('s', f's_add_u32 s{S_WJ}, s{S_WJ}, 0x40000', None)]
            return ops
        ops += [('s', f's_add_u32 s{S_WOF}, s{S_WOF}, ' + (f's{S_WJ}' if tag == ('P', 3) and half else '65536'), None)]
        return ops
    st.mark('last')
    hl = []; hsw = []
    for ks in range(11):
        for jj in range(2):
            if ks < 6:
                hl += [('m', f'buffer_load_dwordx4 {vr(208 + 8*ks + 4*jj)}, v{V_XN}, {sr(S_ACT)}, s{S_AOF} offen sc1', ('H', ks))]
                hsw += [f'v_swap_b32 v{208 + 8*ks + 2 + jj}, v{208 + 8*ks + 4 + jj}']
            else:
                hl += [('m', f'buffer_load_dwordx2 {ar(148 + 8*(ks-6) + 4*rt + 2*jj, 2)}, v{V_XN}, {sr(S_ACT)}, s{S_AOF} offen offset:{8*rt} sc1', ('H', ks)) for rt in range(2)]
            hl += [('s', f's_add_u32 s{S_AOF}, s{S_AOF}, 65536', None)]
    XV = V_PT
    bg = [('s', f's_mov_b32 s12, s{S_PX}', None), ('s', f's_mov_b32 s13, s{S_PX+1}', None), ('s', f's_mov_b32 s14, {XN_BYTES}', None)]
    if 'X' in exp: bg += [('m', f'buffer_load_dword v23, v{OV+rt}, s[12:15], 0 offen', ('t', 0)) for rt in range(2)]
    bg += hl[:20]
    def mk(lo, hi, every): return lambda s: bg_fill(s, bg, vm, lo, hi, every)
    phase_qk(a, 2, True, extra=mk(1, 30, 4))
    phase_pv(a, 2, dma=False, endwait='s_waitcnt lgkmcnt(0)', extra=mk(0, 34, 3))
    bg += w_ops(S_WD, 0, 1, 0, ('W', 0)) + w_ops(S_WD, 0, 1, 1, ('W', 0)) + hl[20:27]
    phase_qk(a, 3, False, extra=mk(1, 30, 4))
    phase_pv(a, 3, dma=False, endwait=lambda: f's_waitcnt vmcnt({vm.wait(("G",31))}) lgkmcnt(0)', extra=mk(0, 34, 3))
    bg += w_ops(S_WD, 1, 2, 0, ('W', 1)) + hl[27:42]
    phase_qk(a, 4, True, extra=mk(1, 30, 4))
    phase_pv(a, 4, dma=False, endwait='s_waitcnt lgkmcnt(0)', extra=mk(0, 34, 3))
    bg += w_ops(S_WD, 1, 2, 1, ('W', 1)) + hl[42:]
    phase_qk(a, 5, False, extra=mk(1, 30, 4))
    phase_pv(a, 5, dma=False, endwait=lambda: f's_waitcnt vmcnt({vm.wait(("G",32))}) lgkmcnt(0)', extra=mk(0, 34, 3))
    PSLOT = [4, 0, 1, 2, 3, 4, 0, 1]
    def wo_pair(P): return w_ops(S_WO, P, PSLOT[P], 0, ('P', P)) + w_ops(S_WO, P, PSLOT[P], 1, ('P', P))
    bg += w_ops(S_WD, 2, 3, 0, ('W', 2)) + w_ops(S_WD, 2, 3, 1, ('W', 2))
    if srot == 2:
        bg += [('s', f's_lshl_b32 s{S_WJ}, s{S_SPL}, 20', None), ('s', f's_lshl_b32 s{S_WOF}, s{S_C}, 16', None), ('s', f's_add_u32 s{S_WOF}, s{S_WOF}, s{S_WJ}', None),
               ('s', f's_lshl_b32 s{S_AJ}, s{S_WJ}, 2', None), ('s', f's_lshl_b32 s{S_AOF}, s{S_WOF}, 2', None)]
    else: bg += [('s', f's_lshr_b32 s{S_T}, s{S_C}, 1' if srot else f's_mov_b32 s{S_T}, 0', None),
           ('s', f's_lshl_b32 s{S_T+1}, s{S_SPL}, 1', None), ('s', f's_add_u32 s{S_T+1}, s{S_T+1}, s{S_T}', None),
           ('s', f's_lshl_b32 s{S_AOF}, s{S_T+1}, 21', None), ('s', f's_lshl_b32 s{S_WOF}, s{S_T+1}, 19', None),
           ('s', f's_lshl_b32 s{S_AJ}, s{S_T}, 22', None), ('s', f's_sub_u32 s{S_AJ}, 131072, s{S_AJ}', None),
           ('s', f's_lshl_b32 s{S_WJ}, s{S_T}, 20', None), ('s', f's_sub_u32 s{S_WJ}, 65536, s{S_WJ}', None)]
    bg += wo_pair(0)
    phase_qk(a, 6, True, extra=mk(1, 30, 4))
    phase_pv(a, 6, kreads=False, dma=False, extra=mk(0, 35, 3))
    u = 7
    for dt in range(8):
        for jj in range(2): a(rd_v(dt, jj, u // 2, u % 2))
    sb = V_S + 32*(u % 2); pb = V_P + 16*(u % 2)
    for i in range(16, 22): a(f'v_exp_f32 v{sb+i}, v{sb+i}')
    a(f's_waitcnt vmcnt({vm.wait(("H",5))}) lgkmcnt(0)')
    def ex7(s):
        for j, i in enumerate(range(22, 32)): s.put(j, f'v_exp_f32 v{sb+i}, v{sb+i}', 'v', 2)
        for j, i in enumerate(range(8, 16)): s.put(10 + j // 2, f'v_cvt_pk_bf16_f32 v{pb+i}, v{sb+2*i}, v{sb+2*i+1}', 'v')
        bg_fill(s, bg, vm, 14, 35, 3)
        for x in hsw: s.place(x, 'v', 14)
    phase_pv(a, u, kreads=False, dma=False, soft=False, extra=ex7)
    assert not bg, bg
    st.mark('att')
    T = V_NM
    a(f's_lshl_b32 s{S_T+1}, s{S_W}, 2\ns_add_u32 s{S_T+1}, s{S_T+1}, {LDS_FLAG}\ns_lshl_b32 s{S_T+2}, s{S_SPL}, 6\ns_nop 0')
    for c2 in range(2):
        for rt in range(2):
            a(f'buffer_load_dwordx2 {vr(XV+4*c2+2*rt,2)}, v{OV+rt}, s[12:15], 0 offen offset:{32*c2}'); vm.add(('X', 0))
    for qt in range(4): a(f'v_accvgpr_read_b32 v{T+2*qt}, a{A_L+4*qt}')
    a(f'v_max3_f32 v{T+8}, v{T}, v{T+2}, v{T+4}\nv_max_f32 v{T+8}, v{T+8}, v{T+6}')
    a(f'v_mov_b32 v{T+9}, 0x5f800000')
    a(f'v_cmp_nlt_f32 vcc, v{T+8}, v{T+9}')
    for qt in range(4): a(f'v_rcp_f32 v{T+2*qt}, v{T+2*qt}')
    a(f's_cmp_lg_u64 vcc, 0\ns_cselect_b32 s{S_T}, 1, 0')
    a(f'v_mov_b32 v{T+9}, s{S_T}\nv_mov_b32 v{T+10}, s{S_T+1}\nds_write_b32 v{T+10}, v{T+9}')
    a(f'v_mov_b32 v{T+10}, {LDS_FLAG}')
    for qt in range(4):
        for e in range(4):
            a(f's_mov_b32 s{S_T}, {131072*e}')
            t = V_S + 16*e
            for r in range(8): a(f'v_accvgpr_read_b32 v{t+r}, a{A_O + 16*(2*e + r//4) + 4*qt + r%4}')
            for r in range(4): a(f'v_pk_mul_f32 {vr(t+2*r,2)}, {vr(t+2*r,2)}, {vr(T+2*qt,2)} op_sel_hi:[1,0]')
            for r in range(4): a(f'v_cvt_pk_bf16_f32 v{t+8+r}, v{t+2*r}, v{t+2*r+1}')
            a(f'buffer_store_dwordx4 {vr(t+8)}, v{V_XN}, {sr(S_O)}, s{S_T} offen offset:{1024*qt} sc1'); vm.add(('O', 0))
    for i in range(8): a(f'v_xor_b32 v{V_RV+i}, s{S_T+2}, v{V_RV+i}')
    for i in range(8): a(f'v_subrev_u32 v{V_RWK+i}, {LDS_V}, v{V_RV+i}')
    RWE = [1, 2, 3, 4, 5, 6, 10, 11]
    for i in range(8): a(f'v_add_u32 v{RWE[i]}, {LDS_V}, v{V_RV+i}')
    a(f's_waitcnt vmcnt(16) lgkmcnt(0)\ns_barrier')
    a(f'ds_read_b128 {vr(T+12)}, v{T+10}')
    st.mark('e1')
    def oact(ks, rt): return ar(A_OA + 8*(ks % 16) + 4*rt)
    items = [('b', ks, ct) for ks in range(11) for ct in range(8)]
    items += [('s', ks, ct) for ks in range(32) for ct in range(8) if ks < 32 - dfr or ct >= 2]
    n_send = len(items)
    items += [('s', ks, ct) for ks in range(32 - dfr, 32) for ct in range(2)]
    NI = len(items); LA = 8
    def rd_p(i, jj):
        ph, ks, ct = items[i]
        slot = 1 + ks // 4 if ph == 'b' else PSLOT[ks // 4]
        half, kk = (ks // 2) % 2, ks % 2
        if slot < 4: adr, off = (V_RV if half else V_RWK) + ct, slot*16384
        else: adr, off = RWE[ct], half*16384
        return f'ds_read_b64_tr_b16 {ar(A_W + 4*(i % 16) + 2*jj, 2)}, v{adr} offset:{off + kk*8192 + jj*4096}'
    for i in range(LA):
        for jj in range(2): a(rd_p(i, jj))
    a('s_waitcnt lgkmcnt(12)')
    a(f'v_or_b32 v{T+12}, v{T+12}, v{T+13}\nv_or3_b32 v{T+12}, v{T+12}, v{T+14}, v{T+15}\ns_nop 0')
    a(f'v_readfirstlane_b32 s{S_T}, v{T+12}\ns_andn2_b32 s{S_T}, s{S_T}, s{S_RETRY}\ns_cbranch_scc1 L{k}_retry')
    PT = V_PT + 12; RB = 208; PS = V_AB + 16; XU = V_AB + 48
    bg = []
    bg += [('s', f's_lshl_b32 s{S_T}, s{S_RT0}, 10', None), ('s', f's_add_u32 s{S_T+1}, s{S_T}, {WS_O}', None),
           ('s', f's_add_u32 s{S_ACT}, s4, s{S_T+1}', None), ('s', f's_addc_u32 s{S_ACT+1}, s5, 0', None), ('s', f's_sub_u32 s{S_ACT+2}, {O_BYTES}, s{S_T}', None),
           ('s', f's_lshl_b32 s{S_T}, s{S_TILE}, 4', None), ('s', f's_add_u32 s{S_T}, s{S_T}, s{S_W}', None), ('s', f's_mul_i32 s{S_T}, s{S_T}, 12288', None), ('s', f's_add_u32 s{S_T}, s{S_T}, {WS_PART}', None),
           ('s', f's_add_u32 s8, s4, s{S_T}', None), ('s', f's_addc_u32 s9, s5, 0', None), ('s', f's_mov_b32 s10, {13*12288}', None)]
    for dst, wv in ((S_T+3, S_W), (S_T+4, S_PW)):
        bg += [('s', f's_lshl_b32 s{dst}, s{S_QB}, 2', None), ('s', f's_add_u32 s{dst}, s{dst}, s{wv}', None), ('s', f's_lshl_b32 s{dst}, s{dst}, 2', None),
               ('s', f's_add_u32 s{dst}, s{dst}, s{S_SPL}', None), ('s', f's_lshl_b32 s{dst}, s{dst}, 7', None), ('s', f's_add_u32 s{dst}, s{dst}, {FL_O}', None)]
    bg += [('s', f's_and_b32 s{S_T}, s{S_HEAD}, 7', None), ('s', f's_lshl_b32 s{S_T}, s{S_T}, 3', None), ('s', f's_add_u32 s{S_T+3}, s{S_T+3}, s{S_T}', None)]
    asc = '' if ('n' in exp or 'i' in exp) else ' sc1'
    def o_ops(ks):
        if srot == 2:
            ops = [('m', f'buffer_load_dwordx4 {oact(ks,rt)}, v{V_XN}, {sr(S_ACT)}, s{S_AOF} offen offset:{1024*rt}{asc}', ('A', ks)) for rt in range(2)]
            ops += [('s', f's_add_u32 s{S_AOF}, s{S_AOF}, 131072', None)]
            if ks % 2 == 1:
                ops += [('s', f's_and_b32 s{S_AOF}, s{S_AOF}, 0xc0000', None), ('s', f's_add_u32 s{S_AOF}, s{S_AOF}, s{S_AJ}', None)]
                if ks % 8 == 5: ops += [('s', f's_add_u32 s{S_AJ}, s{S_AJ}, 0x100000', None)]
            return ops
        return [('m', f'buffer_load_dwordx4 {oact(ks,rt)}, v{V_XN}, {sr(S_ACT)}, s{S_AOF} offen offset:{1024*rt}{asc}', ('A', ks)) for rt in range(2)] + \
               [('s', f's_add_u32 s{S_AOF}, s{S_AOF}, ' + (f's{S_AJ}' if ks == 15 else '131072'), None)]
    def cvt_ops(accb, PT):
        return [('v', f'v_cvt_pk_bf16_f32 v{PT+8*(p-1)+r}, v{accb+16*p+2*r}, v{accb+16*p+2*r+1}', None) for p in range(1, 4) for r in range(8)]
    def send_ops(op, PT):
        ops = []
        for p in range(1, 4):
            ops += [('s', f's_xor_b32 s{S_T}, s{S_SPL}, {p}', None), ('s', f's_mul_i32 s{S_T}, s{S_T}, {4*12288}', None), ('s', f's_add_u32 s{S_T}, s{S_T}, {(p-1)*4096}', None)]
            ops += [('m', f'buffer_store_dwordx4 {vr(PT+8*(p-1)+4*h)}, v{V_XN}, s[8:11], s{S_T} offen offset:{2048*op+1024*h} sc1', ('S', op)) for h in range(2)]
        return ops
    def recv_ops(op):
        ops = []
        for p in range(3):
            ops += [('s', f's_movk_i32 s{S_T+1}, {4096*p}', None)]
            ops += [('m', f'buffer_load_dwordx4 {vr(RB+24*op+8*p+4*h)}, v{V_XN}, {sr(S_IB)}, s{S_T+1} offen offset:{2048*op+1024*h} sc1', ('R', op)) for h in range(2)]
        return ops
    def flush(ops):
        prev = ''
        for kind, ins, tag in ops:
            if kind == 'm' and 'm0' in prev: a('s_nop 0')
            a(ins); prev = ins
            if kind == 'm': vm.add(tag)
    first = {}; lastr = {}
    def res(i): ph, ks, _ = items[i]; return ('W' if ph == 'b' else 'P', ks // 4)
    for i in range(NI): first.setdefault(res(i), i); lastr[res(i)] = i
    start = {}
    for i in range(NI): start.setdefault(items[i][:2], i)
    occupant = {1: None, 2: ('W', 0), 3: ('W', 1), 4: ('W', 2), 5: ('P', 0), 6: ('P', 1), 7: ('P', 2)}
    visible = set([('W', 0), ('W', 1), ('W', 2), ('P', 0)]); nextP = 1
    def dl(q):
        for kind, ins, tag in q:
            if kind == 'm':
                if tag[0] == 'A': return start[('s', tag[1])] - amin
                if tag[0] == 'P': return first[tag] - LA - wmin
                return -1
        return 9999
    bsent = False
    qa = []; qw = []; qv = []; qx = []; nxa = 0; acts_ok = False; gap = 0; nextm = 0; seen = set(); m0gap = -9
    for i in range(NI):
        ph, ks, ct = items[i]
        pre = []; bar = False
        if (ph, ks) == ('b', oflag) and ct == 0:
            assert not bg
            a(f's_waitcnt vmcnt({vm.wait(("O",0))})')
            setflag(a, f's{S_T+3}'); vm.add(('F', 0)); bar = True
            qv += [('v', f'v_and_b32 v{V_F}, 15, v0', None), ('v', f'v_lshlrev_b32 v{V_F}, 2, v{V_F}', None)]
        if (ph, ks) == ('b', pk) and ct == 0:
            assert not qv
            qa.append(('m', f'buffer_load_dword v{V_F+1}, v{V_F}, {sr(S_FL)}, s{S_T+4} offen sc1', ('poll', 1)))
        if i == start[('b', pk)] + pkd:
            st.mark('prepoll')
            a(f's_waitcnt vmcnt({vm.wait(("poll",1))})\nv_cmp_ne_u32 vcc, v{V_E}, v{V_F+1}\ns_nop 1\ns_cbranch_vccz L{k}_ook')
            poll(a, f'L{k}_po', f's{S_T+4}', slp2)
            a(f'L{k}_ook:')
            st.mark('ook')
            acts_ok = True
            if 'i' in exp: a('buffer_inv sc1'); vm.add(('inv', 0))
            for _ in range(NB): flush(o_ops(nxa)); nxa += 1
        if i == start[('s', 0)] + 4: qv += cvt_ops(V_AB, PT)
        if i == start[('s', 4)]:
            assert not qv
            qv += [('v', ins, None) for j in range(8) for ins in (f'v_lshlrev_b32 v{XU+2*j}, 16, v{XV+j}', f'v_and_b32 v{XU+2*j+1}, 0xffff0000, v{XV+j}')]
        if not bsent and i >= n_send - bearly and vm.count(('A', 31)) == 2 and not qw and nextP > 7 and i < n_send:
            bsent = True; qx += send_ops(1, PT)
        if i == n_send:
            assert not (qa or qw or qv or bg)
            st.mark('send')
            flush(qx); qx = []
            if not bsent: flush(send_ops(1, PT))
            a(f's_mov_b32 s12, s{S_POUT}\ns_mov_b32 s13, s{S_POUT+1}\ns_mov_b32 s{S_AJ}, 0xbfb8aa3b\ns_mov_b32 s{S_AJ+1}, 0xbfb8aa3b')
            cv = cvt_ops(V_AS, PS); so = send_ops(0, PS)
            for p in range(3): flush(cv[8*p:8*p+8] + so[5*p:5*p+5])
            st.mark('sent')
        if i == n_send + 1:
            qx += [('s', f's_lshl_b32 s{S_T+3}, s{S_TILE}, 2', None), ('s', f's_add_u32 s{S_T+3}, s{S_T+3}, s{S_W}', None), ('s', f's_lshl_b32 s{S_T+3}, s{S_T+3}, 7', None),
                   ('s', f's_add_u32 s{S_T+3}, s{S_T+3}, {FL_P}', None), ('s', f's_lshl_b32 s{S_T+2}, s{S_SPL}, 3', None), ('s', f's_add_u32 s{S_T+2}, s{S_T+2}, s{S_T+3}', None)]
        if i == NI - rsd:
            assert not qx
            a('s_waitcnt vmcnt(0)')
            setflag(a, f's{S_T+2}')
            qv += [('v', f'v_bfe_u32 v{V_F}, v0, 1, 2', None), ('v', f'v_max_u32 v{V_F}, 1, v{V_F}', None), ('v', f'v_xor_b32 v{V_F}, s{S_SPL}, v{V_F}', None),
                   ('v', f'v_and_b32 v{V_F+1}, 1, v0', None), ('v', f'v_lshl_add_u32 v{V_F}, v{V_F}, 1, v{V_F+1}', None), ('v', f'v_lshlrev_b32 v{V_F}, 2, v{V_F}', None)]
        m = i + LA
        if m < NI and res(m) not in visible:
            assert vm.count(res(m)) == 8, (i, res(m))
            pre.append(f's_waitcnt vmcnt({vm.wait(res(m))})'); bar = True
            w = vm.wait(res(m))
            for r_ in set(vm.q[:len(vm.q) - w]) - set(vm.q[len(vm.q) - w:]):
                if r_[0] == 'P' and vm.count(r_) == 8: visible.add(r_)
        if nextP <= 7 and nextP > 1 and not qw and lastr[occupant[nextP]] < i and i > start[('b', oflag)]: bar = True
        if bar:
            pre.append('s_barrier')
            while nextP <= 7 and (occupant[nextP] is None or lastr[occupant[nextP]] < i):
                qw += wo_pair(nextP); nextP += 1
        if ph == 's' and ks not in seen:
            seen.add(ks)
            assert vm.count(('A', ks)) == 2, ks
            a(f's_waitcnt vmcnt({vm.wait(("A",ks))})')
            st.mark(f's{ks}')
        cur = ks if ph == 's' else -1
        if acts_ok and i < n_send:
            while nxa < 32 and nxa <= cur + alead: qa += o_ops(nxa); nxa += 1
        act = (lambda rt: hfrag(ks, rt)) if ph == 'b' else (lambda rt: oact(ks, rt))
        accb = V_AB if ph == 'b' else V_AS
        for ri in range(2):
            rt = ri if i % 2 == 0 else 1 - ri
            d = vr(accb + 8*ct + 4*rt)
            a(mfma(d, ar(A_W + 4*(i % 16)), act(rt), '0' if ks == 0 else d))
            sc = pre if ri == 0 else []
            if ri == 1 and i % 2 == 1 and i + 1 < NI:
                younger = sum(2 for j in range(i + 3, min(i + LA, NI))) + (1 if i + LA < NI else 0)
                sc = [f's_waitcnt lgkmcnt({younger})']
            if not sc:
                for q in (bg, qx, qa, qw):
                    if q and q[0][0] == 's':
                        sc = [q.pop(0)[1]]
                        if 'm0' in sc[0]: m0gap = gap
                        break
            for x in sc: a(x)
            load = 0
            if m < NI: a(rd_p(m, ri)); load = 1
            if gap >= nextm:
                for q in ((qx, qa, qw) if dl(qa) <= dl(qw) else (qx, qw, qa)):
                    if q and q[0][0] == 'm' and not (q is qw and m0gap == gap and load == 0):
                        _, ins, tag = q.pop(0); a(ins); vm.add(tag); load += 1; nextm = gap + sev; break
            for q in (bg, qv):
                while load < 2 and q and q[0][0] == 'v': a(q.pop(0)[1]); load += 1
            gap += 1
    flush(qx)
    st.mark('dfr')
    U0 = V_AS + 16; U1 = V_AS + 32; U2 = V_AS + 48
    def gather(op, accb):
        R0 = RB + 24*op
        for p in range(3):
            a(f's_waitcnt vmcnt({6*op + 2*(2-p)})')
            for r in range(8): a(f'v_lshlrev_b32 v{U0+2*r}, 16, v{R0+8*p+r}\nv_and_b32 v{U0+2*r+1}, 0xffff0000, v{R0+8*p+r}')
            for r in range(8): a(f'v_pk_add_f32 {vr(accb+2*r,2)}, {vr(accb+2*r,2)}, {vr(U0+2*r,2)}')
    flush(qv)
    poll(a, f'L{k}_pp', f's{S_T+3}', slp)
    st.mark('pp')
    flush(recv_ops(1) + recv_ops(0))
    gather(1, V_AB)
    B_ = V_AB; U2 = XU
    for i in range(8): a(f'v_pk_mul_f32 {vr(U1+2*i,2)}, {vr(B_+2*i,2)}, {sr(S_AJ,2)}')
    for i in range(16): a(f'v_exp_f32 v{U1+i}, v{U1+i}')
    for i in range(8): a(f'v_pk_add_f32 {vr(U1+2*i,2)}, {vr(U1+2*i,2)}, 1.0 op_sel_hi:[1,0]')
    for i in range(16): a(f'v_rcp_f32 v{U1+i}, v{U1+i}')
    a('s_nop 0')
    for i in range(8): a(f'v_pk_mul_f32 {vr(U1+2*i,2)}, {vr(U1+2*i,2)}, {vr(B_+2*i,2)}')
    gather(0, V_AS)
    for i in range(8): a(f'v_pk_fma_f32 {vr(U1+2*i,2)}, {vr(U1+2*i,2)}, {vr(V_AS+2*i,2)}, {vr(U2+2*i,2)}')
    for i in range(8): a(f'v_cvt_pk_bf16_f32 v{U0+i}, v{U1+2*i}, v{U1+2*i+1}')
    for c2 in range(2):
        for rt in range(2):
            a(f'buffer_store_dwordx2 {vr(U0+4*c2+2*rt,2)}, v{OV+rt}, s[12:15], 0 offen offset:{32*c2}')
    if dbg: a('s_waitcnt vmcnt(0)')
    st.mark('end'); st.flush(S_W, V_PT)
    a(f'L{k}_end:\ns_endpgm')
    a(f'L{k}_retry:')
    a(f's_mov_b32 s{S_RETRY}, 1\ns_lshl_b32 s{S_T}, s{S_W}, 6\nv_add_u32 v0, s{S_T}, v0')
    a(f's_waitcnt vmcnt(0) lgkmcnt(0)\ns_barrier\ns_branch L{k}_start')
    a(f'L{k}_maxpass:')
    a(f's_waitcnt vmcnt(0) lgkmcnt(0)\ns_mov_b32 s{S_KO}, 0\ns_mov_b32 m0, s{S_M0}')
    for qt in range(4): a(f'v_mov_b32 v{V_T+2*qt}, 0xff800000')
    a(f'L{k}_mloop:')
    a('s_barrier')
    for i in range(4): a(dma_k(i))
    a('s_waitcnt vmcnt(0)\ns_barrier')
    for un in (1, 0):
        for f in range(8): a(rd_k(f, 0, un))
        a('s_waitcnt lgkmcnt(0)')
        for m in qk_mfmas(V_S, lambda qt: '0'): a(m)
        a('s_nop 7')
        for qt in range(4):
            b = V_S + 8*qt; m = V_T + 2*qt
            for r in range(0, 8, 2): a(f'v_max3_f32 v{m}, v{m}, v{b+r}, v{b+r+1}')
    a(f's_cmp_eq_u32 s{S_RETRY}, 33\ns_cbranch_scc1 L{k}_mdone')
    a(f's_add_u32 s{S_RETRY}, s{S_RETRY}, 1\ns_sub_u32 s{S_KO}, s{S_KO}, 16384\ns_and_b32 s{S_KO}, s{S_KO}, 0x7ffff\ns_branch L{k}_mloop')
    a(f'L{k}_mdone:')
    a(f's_mov_b32 s{S_RETRY}, 1\ns_mov_b32 s{S_KO}, {3*16384}')
    for f in range(8): a(rd_k(f, 0, 1))
    a(f's_branch L{k}_redm')
    a(f'L{k}_codeend:')
    return a.text() + kd(k, 512, 256, 102), (k, 256, 256, LDS_BYTES)
```
